```python
import torch

def _softmax(x, axis=-1):
    return torch.softmax(x, dim=axis)
def _gelu(x):
    return torch.nn.functional.gelu(x, approximate="tanh")
def _silu(x):
    return torch.nn.functional.silu(x)
def _sigmoid(x):
    return torch.sigmoid(x)
def _layernorm(x, axis=-1, eps=1e-5):
    m = x.mean(dim=axis, keepdim=True)
    v = x.var(dim=axis, keepdim=True, unbiased=False)
    return (x - m) / torch.sqrt(v + eps)
def _scatter_add(tgt, idx, src, axis=0):
    return tgt.clone().index_add_(axis, idx, src)
def _segment_sum(src, seg, n):
    out = torch.zeros((n,) + src.shape[1:], dtype=src.dtype)
    return out.index_add_(0, seg, src)
def _pad(x, pw):
    flat = tuple(v for pair in reversed(pw) for v in pair)
    return torch.nn.functional.pad(x, flat)

kernel_name = 'sequential_preLN__sliding_block__dense_activation_squared_relu__prompt'

def setup_inputs():

    _w = (lambda a: (lambda t: t.to(torch.bfloat16) if t.is_floating_point() else t)(torch.as_tensor(a)))
    def _A_setup():
        B, S, D = 1, 2048, 448
        return {
            "x": _w((lambda *s: torch.randn(*s, dtype=torch.bfloat16) * 0.05)(B, S, D)),
            "wqkv": _w((lambda *s: torch.randn(*s, dtype=torch.bfloat16) * 0.05)(D, 3 * D)),
            "wo": _w((lambda *s: torch.randn(*s, dtype=torch.bfloat16) * 0.05)(D, D)),
        }
    _A_in = _A_setup()

    def _B_setup():
        B, S, D, F = 1, 2048, 448, 1792
        return {
            "x": _w((lambda *s: torch.randn(*s, dtype=torch.bfloat16) * 0.05)(B, S, D)),
            "w1": _w((lambda *s: torch.randn(*s, dtype=torch.bfloat16) * 0.05)(D, F)),
            "b1": _w((lambda *s: torch.randn(*s, dtype=torch.bfloat16) * 0.4)(F)),
            "w2": _w((lambda *s: torch.randn(*s, dtype=torch.bfloat16) * 0.05)(F, D)),
            "b2": _w((lambda *s: torch.randn(*s, dtype=torch.bfloat16) * 1.6)(D)),
        }
    _B_in = _B_setup()

    return {
        "A_x": _A_in["x"],
        "A_wqkv": _A_in["wqkv"],
        "A_wo": _A_in["wo"],
        "B_x": _B_in["x"],
        "B_w1": _B_in["w1"],
        "B_b1": _B_in["b1"],
        "B_w2": _B_in["w2"],
        "B_b2": _B_in["b2"],
    }

def reference(A_x, A_wqkv, A_wo, B_x, B_w1, B_b1, B_w2, B_b2):
    def _A_ref(x, wqkv, wo):
        B, S, D = x.shape
        H = 16; Dh = D // H; W = 256
        qkv = (lambda x, *d: x.permute(*d))((x @ wqkv).reshape(B, S, 3, H, Dh), 2, 0, 3, 1, 4)
        q, k, v = qkv[0], qkv[1], qkv[2]
        scores = torch.einsum("bhqd,bhkd->bhqk", q, k) * (Dh ** -0.5)
        idx = torch.arange(S)
        mask = (idx[:, None] - idx[None, :] >= 0) & (idx[:, None] - idx[None, :] < W)
        scores = torch.where(mask[None, None], scores, -1e9)
        p = _softmax(scores, axis=-1)
        o = torch.einsum("bhqk,bhkd->bhqd", p, v)
        return (lambda x, *d: x.permute(*d))(o, 0, 2, 1, 3).reshape(B, S, D) @ wo

    def _B_ref(x, w1, b1, w2, b2):
        h = torch.einsum("bsd,df->bsf", x, w1) + b1
        zero = torch.zeros_like(h)
        r = torch.where(h > zero, h, zero)
        h = r * r
        out = torch.einsum("bsf,fd->bsd", h, w2) + b2
        return out

    x = A_x
    h = x + _A_ref(_layernorm(x, axis=-1), A_wqkv, A_wo)
    h2 = h + _B_ref(_layernorm(h, axis=-1), B_w1, B_b1, B_w2, B_b2)
    return h2
```

```python
import re

REG_RE = re.compile(r'^([vas])(\d+)$')
RNG_RE = re.compile(r'^([vas])\[(\d+):(\d+)\]$')

def parse_reg(tok):
    tok = tok.strip()
    neg = tok.startswith('-')
    if neg: tok = tok[1:]
    if tok.startswith('abs(') and tok.endswith(')'): tok = tok[4:-1]
    if tok.startswith('|') and tok.endswith('|'): tok = tok[1:-1]
    m = REG_RE.match(tok)
    if m: return {(m.group(1), int(m.group(2)))}
    m = RNG_RE.match(tok)
    if m: return {(m.group(1), i) for i in range(int(m.group(2)), int(m.group(3)) + 1)}
    if tok == 'vcc': return {('s', 'vcc')}
    if tok in ('vcc_lo', 'vcc_hi'): return {('s', 'vcc')}
    if tok == 'exec': return {('s', 'exec')}
    if tok == 'm0': return {('s', 'm0')}
    return set()

def mfma_passes(op):
    if '32x32x16' in op or '32x32x8' in op: return 8
    if '16x16x32' in op or '16x16x16' in op: return 4
    if '4x4x4' in op: return 2
    raise ValueError(op)

TRANS = ('v_exp_f32', 'v_log_f32', 'v_rcp_f32', 'v_rsq_f32', 'v_sqrt_f32', 'v_sin_f32', 'v_cos_f32')

class Ins:
    __slots__ = ('text', 'op', 'kind', 'wr', 'rd', 'passes', 'srcC', 'srcAB', 'is_nop', 'nops', 'dpp', 'store_data', 'lds_dma')

def split_ops(rest):
    out, depth, cur = [], 0, ''
    for ch in rest:
        if ch == '[' or ch == '(': depth += 1
        if ch == ']' or ch == ')': depth -= 1
        if ch == ',' and depth == 0:
            out.append(cur.strip()); cur = ''
        else:
            cur += ch
    if cur.strip(): out.append(cur.strip())
    return out

def analyze(text):
    I = Ins(); I.text = text
    t = text.split(';')[0].split('//')[0].strip()
    parts = t.split(None, 1)
    op = parts[0]; rest = parts[1] if len(parts) > 1 else ''
    I.op = op; I.wr = set(); I.rd = set(); I.passes = 0; I.srcC = set(); I.srcAB = set(); I.nops = 1
    I.dpp = False; I.store_data = set(); I.lds_dma = False
    ops = split_ops(rest)
    mods = ''
    if ops:
        last = ops[-1].split()
        if len(last) > 1:
            ops[-1] = last[0]; mods = ' '.join(last[1:])
    if op == 's_nop':
        I.kind = 'nop'; I.nops = int(ops[0]) + 1; return I
    if op.startswith('v_mfma'):
        I.kind = 'mfma'; I.passes = mfma_passes(op)
        I.wr = parse_reg(ops[0]); I.srcAB = parse_reg(ops[1]) | parse_reg(ops[2]); I.srcC = parse_reg(ops[3])
        I.rd = I.srcAB | I.srcC
        return I
    if op.startswith('v_'):
        I.kind = 'valu'
        if 'dpp' in op or 'row_' in mods or 'quad_perm' in mods: I.dpp = True
        if op.startswith('v_cmp'):
            I.wr = parse_reg(ops[0])
            for o in ops[1:]: I.rd |= parse_reg(o)
            if op.startswith('v_cmpx'): I.wr |= {('s', 'exec')}
        elif op.startswith('v_permlane') and 'swap' in op:
            r = parse_reg(ops[0]) | parse_reg(ops[1]); I.wr = set(r); I.rd = set(r); I.kind = 'permlane'
        elif op in ('v_add_co_u32', 'v_sub_co_u32', 'v_addc_co_u32', 'v_subb_co_u32', 'v_subrev_co_u32'):
            I.wr = parse_reg(ops[0]) | parse_reg(ops[1])
            for o in ops[2:]: I.rd |= parse_reg(o)
        else:
            I.wr = parse_reg(ops[0])
            for o in ops[1:]: I.rd |= parse_reg(o)
            if op.startswith(('v_fmac', 'v_dot2c', 'v_mac', 'v_writelane')): I.rd |= I.wr
        return I
    if op.startswith('ds_'):
        I.kind = 'ds'
        if op.startswith('ds_read') or op.startswith('ds_bpermute') or op.startswith('ds_swizzle') or op.startswith('ds_permute'):
            I.wr = parse_reg(ops[0])
            for o in ops[1:]: I.rd |= parse_reg(o)
        else:
            for o in ops: I.rd |= parse_reg(o)
        return I
    if op.startswith('buffer_') or op.startswith('global_'):
        I.kind = 'vmem'
        allmods = mods.split()
        if 'lds' in allmods or 'lds_dword' in op:
            I.lds_dma = True
            for o in ops: I.rd |= parse_reg(o)
            I.rd |= {('s', 'm0')}
        elif 'load' in op:
            I.wr = parse_reg(ops[0])
            for o in ops[1:]: I.rd |= parse_reg(o)
        elif 'store' in op:
            for o in ops: I.rd |= parse_reg(o)
            if op.startswith('buffer_store'):
                d = parse_reg(ops[0])
            else:
                d = parse_reg(ops[1])
            if len(d) >= 3: I.store_data = d
        elif 'atomic' in op:
            for o in ops: I.rd |= parse_reg(o)
            if 'sc0' in allmods: I.wr = parse_reg(ops[0])
        else:
            pass
        return I
    if op.startswith('s_'):
        I.kind = 'salu'
        if op.startswith(('s_cmp', 's_bitcmp', 's_cbranch', 's_branch', 's_waitcnt', 's_barrier', 's_endpgm', 's_sleep', 's_setprio', 's_setreg')):
            for o in ops: I.rd |= parse_reg(o)
        elif op.startswith(('s_load', 's_buffer_load', 's_memtime', 's_memrealtime', 's_getreg', 's_getpc')):
            I.wr = parse_reg(ops[0])
            for o in ops[1:]: I.rd |= parse_reg(o)
            I.kind = 'smem' if not op.startswith(('s_getreg', 's_getpc')) else 'salu'
        elif 'saveexec' in op:
            I.wr = parse_reg(ops[0]) | {('s', 'exec')}
            for o in ops[1:]: I.rd |= parse_reg(o)
        else:
            I.wr = parse_reg(ops[0])
            for o in ops[1:]: I.rd |= parse_reg(o)
        return I
    raise ValueError("unknown instr: " + text)

def need_gap(prev, cur):
    g = 0
    pv = {r for r in prev.wr if r[0] in 'va'}
    ps = {r for r in prev.wr if r[0] == 's'}
    cur_v_rd = {r for r in cur.rd if r[0] in 'va'}
    cur_v_wr = {r for r in cur.wr if r[0] in 'va'}
    cur_s_rd = {r for r in cur.rd if r[0] == 's'}
    is_valu = lambda x: x.kind in ('valu', 'permlane')
    if prev.kind == 'mfma':
        P = prev.passes
        ov = {2: 4, 4: 6, 8: 10}[P]; ab = {2: 5, 4: 8, 8: 12}[P]
        if cur.kind == 'mfma':
            if pv & cur.srcAB: g = max(g, ab)
            if pv & cur.srcC:
                if cur.srcC == prev.wr and cur.passes == P:
                    g = max(g, 2 if P == 2 else 0)
                else:
                    g = max(g, ov)
            elif pv & cur_v_wr: g = max(g, ov)
        else:
            if pv & (cur_v_rd | cur_v_wr): g = max(g, ab)
            if is_valu(cur) and (prev.srcC & cur_v_wr): g = max(g, {2: 1, 4: 3, 8: 7}[P])
            if cur.kind in ('ds', 'vmem') and (prev.srcC & cur_v_wr): g = max(g, {2: 1, 4: 3, 8: 7}[P])
    if is_valu(prev):
        if cur.kind == 'mfma' and (pv & cur.rd): g = max(g, 2)
        if cur.kind == 'mfma' and ('s', 'exec') in ps: g = max(g, 4)
        if cur.kind == 'permlane' and (pv & cur.rd): g = max(g, 2)
        if cur.kind == 'permlane' and ('s', 'exec') in ps: g = max(g, 4)
        if cur.dpp and (pv & cur.rd): g = max(g, 2)
        if cur.dpp and ('s', 'exec') in ps: g = max(g, 5)
        if cur.op.startswith(('v_readfirstlane', 'v_readlane')) and (pv & cur.rd): g = max(g, 1)
        if cur.op.startswith(('v_readfirstlane', 'v_readlane', 'v_writelane')) and ('s', 'exec') in ps: g = max(g, 4)
        if cur.kind == 'vmem' and (ps & cur_s_rd): g = max(g, 5)
        if is_valu(cur) and (ps & cur_s_rd): g = max(g, 2)
        if cur.op.startswith(('v_readlane', 'v_writelane')) and (ps & cur_s_rd): g = max(g, 4)
        if cur.kind in ('salu', 'smem') and (ps & cur_s_rd): g = max(g, 3)
        if prev.op in TRANS and is_valu(cur) and (pv & cur.rd): g = max(g, 1)
        if prev.op in TRANS and cur.kind in ('mfma', 'ds', 'vmem') and (pv & cur.rd): g = max(g, 2)
    if prev.kind == 'salu':
        if ('s', 'm0') in ps and (cur.lds_dma): g = max(g, 1)
    if prev.kind == 'vmem' and prev.store_data:
        if prev.store_data & cur_v_wr: g = max(g, 2)
    return g

class Asm:
    GUID = 0
    def __init__(self):
        self.lines = []
        self.hist = []
        self.vm = []
        self.lg = []
        self.nop_count = 0
        self.uid = 0
        self.snap = {}
        self.alts = []
        self.label_pos = {}
        self.all = []
    def raw(self, text):
        self.lines.append(text)
    def comment(self, t):
        self.lines.append('; ' + t)
    def label(self, name):
        self.lines.append(name + ':')
        self.label_pos[name] = len(self.all)
        for h in self.snap.pop(name, []):
            self.alts.append([list(h), 0])
    def barrier_hist(self):
        pass
    def newlabel(self, base='L'):
        Asm.GUID += 1
        return f'{base}_{Asm.GUID}'
    def __call__(self, text, tag=None):
        for line in text.strip().split('\n'):
            line = line.strip()
            if not line or line.startswith(';'):
                continue
            self.emit(line, tag)
    def emit(self, text, tag=None):
        I = analyze(text)
        need = 0
        for hist in [self.hist] + [h[0] for h in self.alts]:
            dist = 0
            for prev in reversed(hist):
                g = need_gap(prev, I)
                if g - dist > need: need = g - dist
                dist += prev.nops
                if dist > 24: break
        if I.op.startswith(('s_cbranch', 's_branch')):
            tgt = text.split()[1]
            if tgt in self.label_pos:
                body = self.all[self.label_pos[tgt]: self.label_pos[tgt] + 24]
                for hist in [self.hist] + [h[0] for h in self.alts]:
                    off = 1
                    for b in body:
                        dist = off
                        for prev in reversed(hist):
                            g = need_gap(prev, b)
                            if g - dist > need: need = g - dist
                            dist += prev.nops
                            if dist > 24: break
                        off += b.nops
                        if off > 24: break
        while need > 0:
            n = min(need, 16)
            self._push(analyze(f's_nop {n-1}'))
            self.nop_count += 1
            need -= n
        self._push(I)
        if I.op.startswith(('s_cbranch', 's_branch')):
            tgt = text.split()[1]
            if tgt not in self.label_pos:
                self.snap.setdefault(tgt, []).append(list(self.hist))
        if I.kind == 'vmem' and I.op not in ('buffer_wbl2', 'buffer_inv'):
            self.vm.append(tag)
        elif I.kind == 'vmem':
            self.vm.append(tag)
        if I.kind == 'ds':
            self.lg.append(tag)
        if I.op == 's_waitcnt':
            m = re.search(r'vmcnt\((\d+)\)', text)
            if m:
                n = int(m.group(1))
                if len(self.vm) > n: self.vm = self.vm[len(self.vm) - n:] if n else []
            m = re.search(r'lgkmcnt\((\d+)\)', text)
            if m:
                n = int(m.group(1))
                if len(self.lg) > n: self.lg = self.lg[len(self.lg) - n:] if n else []
    def _push(self, I):
        self.lines.append('  ' + I.text)
        self.hist.append(I)
        self.all.append(I)
        if len(self.hist) > 40: self.hist = self.hist[-40:]
        for h in self.alts:
            h[0].append(I); h[1] += I.nops
        self.alts = [h for h in self.alts if h[1] < 32]
    def pad(self, n=16):
        while n > 0:
            k = min(n, 16); self.emit(f's_nop {k-1}'); n -= k
    def wait_vm(self, tag):
        idx = -1
        for i, t in enumerate(self.vm):
            if t == tag: idx = i
        if idx < 0: return
        n = len(self.vm) - 1 - idx
        assert n <= 63, "vmcnt overflow"
        self.emit(f's_waitcnt vmcnt({n})')
    def wait_lg(self, tag):
        idx = -1
        for i, t in enumerate(self.lg):
            if t == tag: idx = i
        if idx < 0: return
        n = len(self.lg) - 1 - idx
        n = min(n, 15)
        self.emit(f's_waitcnt lgkmcnt({n})')
    def check_vm(self):
        assert len(self.vm) <= 63, "too many outstanding vmem: %d" % len(self.vm)
    def text(self):
        return '\n'.join(self.lines) + '\n'

def vr(a, n=1):
    return f'v{a}' if n == 1 else f'v[{a}:{a+n-1}]'
def ar(a, n=1):
    return f'a{a}' if n == 1 else f'a[{a}:{a+n-1}]'
def sr(a, n=1):
    return f's{a}' if n == 1 else f's[{a}:{a+n-1}]'
```

```python
import sys, math
sys.path.insert(0, 'dev')
from asmlib import *

NAME = "sequential_preLN__sliding_block__dense_activation_squared_relu__prompt"
REF = f'cdna_kernels/{NAME}.s.ref'
HDR = open(REF).read().split('; Override')[0]

S, D, H, DH, F = 2048, 448, 16, 28, 1792
WS_O   = 0x000000
WS_H   = 0x200000
WS_ST  = 0x400000
WS_HID = 0x480000
WS_FLAG= 0xC00000
WS_DBG = 0x1000000
sX, sWQKV, sWO, sW1, sB1, sW2, sB2, sOUT, sWS, sDBG = 28, 32, 36, 40, 44, 48, 52, 56, 60, 64
sG, sR, sW = 68, 69, 70
sT0, sT1, sT2, sT3, sT4, sT5 = 71, 72, 73, 74, 75, 76

def f32bits(x):
    import struct
    return struct.unpack('<I', struct.pack('<f', x))[0]

def kd(name, vgpr, acc, sgpr=100):
    return f""".section .rodata,"a"
.p2align 6
.amdhsa_kernel {name}
  .amdhsa_next_free_vgpr {vgpr}
  .amdhsa_next_free_sgpr {sgpr}
  .amdhsa_accum_offset {acc}
  .amdhsa_group_segment_fixed_size 0
  .amdhsa_kernarg_size 88
  .amdhsa_user_sgpr_count 2
  .amdhsa_user_sgpr_kernarg_segment_ptr 1
  .amdhsa_system_sgpr_workgroup_id_x 1
  .amdhsa_float_denorm_mode_32 3
  .amdhsa_float_denorm_mode_16_64 3
.end_amdhsa_kernel
.text
"""

def srd(A, d, p, size):
    A(f"s_mov_b32 s{d}, s{p}")
    A(f"s_and_b32 s{d+1}, s{p+1}, 0xffff")
    A(f"s_mov_b32 s{d+2}, {size}")
    A(f"s_mov_b32 s{d+3}, 0x20000")

def prologue(A, name):
    A.raw(f".globl {name}\n.p2align 8\n.type {name},@function\n{name}:")
    A(f"s_cmp_ge_u32 s2, 256")
    A(f"s_cbranch_scc1 {name}_done")
    A("s_load_dwordx16 s[4:19], s[0:1], 0")
    A("s_load_dwordx4 s[20:23], s[0:1], 64")
    A("s_load_dwordx2 s[24:25], s[0:1], 80")
    A(f"s_and_b32 s{sG}, s2, 7")
    A(f"s_lshl_b32 s{sG}, s{sG}, 1")
    A(f"s_lshr_b32 s{sT0}, s2, 7")
    A(f"s_add_u32 s{sG}, s{sG}, s{sT0}")
    A(f"s_lshr_b32 s{sR}, s2, 3")
    A(f"s_and_b32 s{sR}, s{sR}, 15")
    A("v_lshrrev_b32 v2, 6, v0")
    A("v_and_b32 v1, 63, v0")
    A(f"v_readfirstlane_b32 s{sW}, v2")
    A("s_waitcnt lgkmcnt(0)")
    srd(A, sX, 4, S*D*2)
    srd(A, sWQKV, 6, D*3*D*2)
    srd(A, sWO, 8, D*D*2)
    srd(A, sW1, 12, D*F*2)
    srd(A, sB1, 14, F*2)
    srd(A, sW2, 16, F*D*2)
    srd(A, sB2, 18, D*2)
    srd(A, sOUT, 20, S*D*2)
    srd(A, sDBG, 22, 256)
    srd(A, sWS, 24, 0x10000000)

STAMPS = False
NOMFMA = False
NODMA = False
def stamp(A, idx):
    if not STAMPS: return
    A("s_waitcnt lgkmcnt(0)")
    A("s_memtime s[98:99]")
    A("s_waitcnt lgkmcnt(0)")
    A(f"v_writelane_b32 v255, s98, {idx}")
def stamp_dump(A, kidx):
    if not STAMPS: return
    A(f"s_lshl_b32 s{sT0}, s2, 2")
    A(f"s_add_u32 s{sT0}, s{sT0}, s{sW}")
    A(f"s_lshl_b32 s{sT0}, s{sT0}, 8")
    A(f"s_add_u32 s{sT0}, s{sT0}, {WS_DBG + kidx*0x40000}")
    A("v_lshlrev_b32 v254, 2, v1")
    A(f"buffer_store_dword v255, v254, s[{sWS}:{sWS+3}], s{sT0} offen")

def interleave(A, main, fill):
    def do(x):
        if callable(x): x()
        elif isinstance(x, tuple): A(x[0], tag=x[1])
        else: A(x)
    n, m = len(main), len(fill)
    j = 0
    for i, x in enumerate(main):
        do(x)
        want = (i + 1) * m // n
        while j < want:
            do(fill[j]); j += 1
    while j < m:
        do(fill[j]); j += 1

W_BASE = 0
XR_BASE = 86016
CS_BASE = XR_BASE + 65536
RS_BASE = CS_BASE + 3072
P1_LDS = RS_BASE + 2048
KV_BASE = XR_BASE

def p1(A, dbg=False, sc=""):
    ACC = 16
    aq, ak0, av0, ak1, av1, ak2, av2 = [ACC + 16*i for i in range(7)]
    AK = [ak0, ak1, ak2]; AV = [av0, av1, av2]
    XB = [128, 144]
    SQ = [160, 164, 168]; CS = [172, 176, 180]; ONES = 184
    vOW = [186, 187, 188]; vOX = [[189, 190], [191, 192], [193, 194]]
    vXR = [195, 196, 197, 198]; vWR = [199, 200]
    T = list(range(201, 240))
    QF = 240
    sRING, sWOFF, sWM0 = 77, 78, 79
    sI = [80, 81, 82, 83]
    sM1, sM2, sM3 = 84, 86, 88
    sHI = 90
    sL28 = 92
    sOH = 94
    stamp(A, 0)
    if STAMPS:
        A("s_memrealtime s[98:99]"); A("s_waitcnt lgkmcnt(0)"); A("v_writelane_b32 v255, s98, 40")
    A(f"v_and_b32 v{T[0]}, 3, v1")
    A(f"v_cmp_eq_u32 s[{sM1}:{sM1+1}], 1, v{T[0]}")
    A(f"v_cmp_eq_u32 s[{sM2}:{sM2+1}], 2, v{T[0]}")
    A(f"v_cmp_eq_u32 s[{sM3}:{sM3+1}], 3, v{T[0]}")
    A(f"s_mov_b32 s{sHI}, 0")
    A(f"s_mov_b32 s{sHI+1}, -1")
    A(f"s_mov_b32 s{sL28}, 0x10000000")
    A(f"s_mov_b32 s{sL28+1}, 0x10000000")
    for i in range(4): A(f"s_mov_b32 s{sI[i]}, {i*7168}")
    A(f"s_mul_i32 s{sT0}, s{sR}, 56")
    A(f"s_and_b32 s{sOH}, s{sT0}, 15")
    A(f"s_andn2_b32 s{sT0}, s{sT0}, 15")
    A(f"s_mul_i32 s{sWOFF}, s{sW}, {16*2688}")
    A(f"s_add_u32 s{sWOFF}, s{sWOFF}, s{sT0}")
    A(f"s_mul_i32 s{sWM0}, s{sW}, 3072")
    A(f"s_lshl_b32 s{sRING}, s{sW}, 14")
    A(f"s_add_u32 s{sRING}, s{sRING}, {XR_BASE}")
    for p in range(3):
        A(f"v_add_u32 v{T[0]}, {64*p}, v1")
        A(f"v_mul_u32_u24 v{T[1]}, 43691, v{T[0]}")
        A(f"v_lshrrev_b32 v{T[1]}, 19, v{T[1]}")
        A(f"v_mul_u32_u24 v{T[2]}, 12, v{T[1]}")
        A(f"v_sub_u32 v{T[2]}, v{T[0]}, v{T[2]}")
        A(f"v_lshrrev_b32 v{T[3]}, 2, v{T[2]}")
        A(f"v_and_b32 v{T[2]}, 3, v{T[2]}")
        A(f"v_mul_u32_u24 v{T[1]}, 2688, v{T[1]}")
        A(f"v_mul_u32_u24 v{T[3]}, 896, v{T[3]}")
        A(f"v_lshlrev_b32 v{T[2]}, 4, v{T[2]}")
        A(f"v_add3_u32 v{vOW[p]}, v{T[1]}, v{T[3]}, v{T[2]}")
    A(f"s_lshl_b32 s{sT0}, s{sG}, 7")
    A(f"s_lshl_b32 s{sT1}, s{sW}, 5")
    A(f"s_add_u32 s{sT0}, s{sT0}, s{sT1}")
    A(f"s_mul_i32 s{sT0}, s{sT0}, 896")
    A(f"v_lshrrev_b32 v{T[0]}, 3, v1")
    A(f"v_mul_u32_u24 v{T[0]}, 896, v{T[0]}")
    A(f"v_add_u32 v{T[0]}, s{sT0}, v{T[0]}")
    A(f"v_and_b32 v{T[1]}, 7, v1")
    A(f"v_lshrrev_b32 v{T[2]}, 4, v1")
    A(f"v_xor_b32 v{T[1]}, v{T[1]}, v{T[2]}")
    A(f"v_xor_b32 v{T[2]}, 4, v{T[1]}")
    A(f"v_lshlrev_b32 v{T[1]}, 4, v{T[1]}")
    A(f"v_lshlrev_b32 v{T[2]}, 4, v{T[2]}")
    A(f"v_add_u32 v{vOX[0][0]}, v{T[0]}, v{T[1]}")
    A(f"v_add_u32 v{vOX[0][1]}, v{T[0]}, v{T[2]}")
    for t, back in ((1, 256*896), (2, 128*896)):
        A(f"v_subrev_u32 v{vOX[t][0]}, {back}, v{vOX[0][0]}")
        A(f"v_subrev_u32 v{vOX[t][1]}, {back}, v{vOX[0][1]}")
    def dma_w(kb):
        for p in range(3):
            A(f"s_add_u32 s{sT0}, s{sWOFF}, {kb*4*16*2688}")
            A(f"s_add_u32 m0, s{sWM0}, {W_BASE + (12*kb+p)*1024}")
            A(f"buffer_load_dwordx4 v{vOW[p]}, s[{sWQKV}:{sWQKV+3}], s{sT0} offen lds", tag=f"W{kb}")
    def dma_w_list(kb):
        out = []
        for p in range(3):
            def f(p=p):
                A(f"s_add_u32 s{sT0}, s{sWOFF}, {kb*4*16*2688}")
                A(f"s_add_u32 m0, s{sWM0}, {W_BASE + (12*kb+p)*1024}")
                A(f"buffer_load_dwordx4 v{vOW[p]}, s[{sWQKV}:{sWQKV+3}], s{sT0} offen lds", tag=f"W{kb}")
            out.append(f)
        return out
    def dma_x_list(u):
        kb, tt, slot = u // 3, u % 3, u & 3
        out = []
        for i in range(4):
            def f(i=i):
                A(f"s_add_u32 m0, s{sRING}, {slot*4096 + i*1024 - kb*128}")
                A(f"buffer_load_dwordx4 v{vOX[tt][i&1]}, s[{sX}:{sX+3}], s{sI[i]} offen offset:{kb*128} lds", tag=f"X{u}")
            out.append(f)
        return out
    dma_w(0)
    for u in range(3):
        for f in dma_x_list(u): f()
    dma_w(1)
    for f in dma_x_list(3): f()
    A(f"v_and_b32 v{T[0]}, 31, v1")
    A(f"v_lshrrev_b32 v{T[1]}, 5, v1")
    A(f"v_bfe_u32 v{T[2]}, v{T[0]}, 1, 3")
    A(f"v_xor_b32 v{T[2]}, v{T[2]}, v{T[1]}")
    A(f"v_lshlrev_b32 v{T[3]}, 7, v{T[0]}")
    A(f"v_add_u32 v{T[3]}, s{sRING}, v{T[3]}")
    for s in range(4):
        A(f"v_xor_b32 v{T[4]}, {2*s}, v{T[2]}")
        A(f"v_lshl_add_u32 v{vXR[s]}, v{T[4]}, 4, v{T[3]}")
    A(f"v_bfe_u32 v{T[2]}, v1, 2, 2")
    A(f"v_lshl_add_u32 v{T[2]}, v{T[1]}, 3, v{T[2]}")
    A(f"v_mul_u32_u24 v{T[2]}, 192, v{T[2]}")
    A(f"v_bfe_u32 v{T[3]}, v1, 4, 1")
    A(f"v_lshl_add_u32 v{T[2]}, v{T[3]}, 5, v{T[2]}")
    A(f"v_and_b32 v{T[3]}, 3, v1")
    A(f"v_lshl_add_u32 v{T[2]}, v{T[3]}, 3, v{T[2]}")
    A(f"v_add_u32 v{vWR[0]}, s{sOH}, v{T[2]}")
    A(f"v_add_u32 v{vWR[1]}, {320*192}, v{vWR[0]}")
    for r in range(ACC, ACC+112): A(f"v_mov_b32 v{r}, 0")
    for r in range(160, 184): A(f"v_mov_b32 v{r}, 0")
    A(f"v_mov_b32 v{ONES}, 0x3f803f80")
    A(f"v_mov_b32 v{ONES+1}, 0x3f803f80")
    def wfrag(kb, seg, s): return (kb & 1) * 48 + (seg*4 + s) * 4
    def w_reads(kb):
        out = []
        for s in range(4):
            for seg in range(3):
                for u2 in range(2):
                    base = 0 if kb < 5 else 1
                    off = (64*kb + 16*s + 4*u2 - (320 if base else 0)) * 192 + seg*64
                    out.append((f"ds_read_b64_tr_b16 a[{wfrag(kb,seg,s)+2*u2}:{wfrag(kb,seg,s)+2*u2+1}], v{vWR[base]} offset:{off}", f"wf{kb}"))
        return out
    def x_reads(u):
        slot = u & 3
        return [(f"ds_read_b128 v[{XB[u&1]+4*s}:{XB[u&1]+4*s+3}], v{vXR[s]} offset:{slot*4096}", f"xf{u}") for s in range(4)]
    stamp(A, 1)
    A.wait_vm("W0")
    stamp(A, 2)
    A("s_barrier")
    for x in w_reads(0): A(x[0], tag=x[1])
    A.wait_vm("X0")
    for x in x_reads(0): A(x[0], tag=x[1])
    MF = "v_mfma_f32_32x32x16_bf16"
    MS = "v_mfma_f32_4x4x4_16b_bf16"
    for u in range(21):
        kb, tt = u // 3, u % 3
        xb = XB[u & 1]
        stamp(A, 8 + u)
        A("s_waitcnt lgkmcnt(0)")
        if tt == 0:
            A(f"s_mov_b64 exec, s[{sL28}:{sL28+1}]")
            for s in range(4):
                for j in range(4):
                    A(f"v_accvgpr_write_b32 a{wfrag(kb,1,s)+j}, v{ONES}")
            A("s_mov_b64 exec, -1")
        main = []
        for s in range(4):
            xf = f"v[{xb+4*s}:{xb+4*s+3}]"
            wq, wk, wv = [f"a[{wfrag(kb,seg,s)}:{wfrag(kb,seg,s)+3}]" for seg in range(3)]
            if tt == 0:
                main.append(f"{MF} v[{aq}:{aq+15}], {wq}, {xf}, v[{aq}:{aq+15}]")
            main.append(f"{MF} v[{AK[tt]}:{AK[tt]+15}], {wk}, {xf}, v[{AK[tt]}:{AK[tt]+15}]")
            main.append(f"{MS} v[{SQ[tt]}:{SQ[tt]+3}], v[{xb+4*s}:{xb+4*s+1}], v[{xb+4*s}:{xb+4*s+1}], v[{SQ[tt]}:{SQ[tt]+3}]")
            main.append(f"{MF} v[{AV[tt]}:{AV[tt]+15}], {xf}, {wv}, v[{AV[tt]}:{AV[tt]+15}]")
            main.append(f"{MS} v[{SQ[tt]}:{SQ[tt]+3}], v[{xb+4*s+2}:{xb+4*s+3}], v[{xb+4*s+2}:{xb+4*s+3}], v[{SQ[tt]}:{SQ[tt]+3}]")
        dmas = []
        if u + 4 <= 20: dmas += dma_x_list(u + 4)
        if tt == 1 and kb + 2 <= 6:
            dmas += dma_w_list(kb + 2)
        other = []
        if u + 1 <= 20:
            other.append(lambda u=u: A.wait_vm(f"X{u+1}"))
            other += x_reads(u + 1)
        if tt == 1 and kb + 1 <= 6:
            other.append(lambda kb=kb: (A.wait_vm(f"W{kb+1}"), A("s_barrier")))
            other += w_reads(kb + 1)[:12]
        if tt == 2 and kb + 1 <= 6:
            other += w_reads(kb + 1)[12:]
        fill = []
        nd, no = len(dmas), len(other)
        tot = nd + no
        di = oi = 0
        for q in range(tot):
            if di < nd and (di * tot <= q * nd or oi >= no):
                fill.append(dmas[di]); di += 1
            else:
                fill.append(other[oi]); oi += 1
        if NOMFMA: main = ["s_nop 0"] * len(main)
        if NODMA: fill = [x for x in fill if x not in dmas]
        interleave(A, main, fill)
        if tt == 2 and not NOMFMA:
            for s in range(4):
                lab = A.newlabel("Lcs")
                A(f"s_cmp_lg_u32 s{sW}, {s}")
                A(f"s_cbranch_scc1 {lab}")
                for half in range(2):
                    for seg in range(3):
                        w0 = wfrag(kb, seg, s) + 2*half
                        A(f"{MS} v[{CS[seg]}:{CS[seg]+3}], a[{w0}:{w0+1}], v[{ONES}:{ONES+1}], v[{CS[seg]}:{CS[seg]+3}]")
                A.label(lab)
    stamp(A, 30)
    def sel4(dst, base):
        A(f"v_cndmask_b32 v{dst}, v{base}, v{base+1}, s[{sM1}:{sM1+1}]")
        A(f"v_cndmask_b32 v{dst}, v{dst}, v{base+2}, s[{sM2}:{sM2+1}]")
        A(f"v_cndmask_b32 v{dst}, v{dst}, v{base+3}, s[{sM3}:{sM3+1}]")
    A(f"v_and_b32 v{T[0]}, 31, v1")
    A(f"v_lshrrev_b32 v{T[1]}, 5, v1")
    A(f"v_lshlrev_b32 v{T[2]}, 5, v{T[0]}")
    A(f"v_add_u32 v{T[2]}, {CS_BASE}, v{T[2]}")
    A(f"s_lshl_b32 s{sT0}, s{sW}, 3")
    A(f"v_lshl_add_u32 v{T[3]}, v{T[1]}, 2, v{T[2]}")
    A(f"v_add_u32 v{T[3]}, s{sT0}, v{T[3]}")
    for seg in range(3):
        sel4(T[4+seg], CS[seg])
        A(f"ds_write_b32 v{T[3]}, v{T[4+seg]} offset:{seg*1024}")
    MEAN = [T[8], T[9], T[10]]; RSTD = [T[11], T[12], T[13]]
    XC = [T[14], T[15], T[16]]
    for t in range(3):
        sel4(T[4], SQ[t])
        A(f"v_mov_b32 v{T[5]}, v{T[4]}")
        A(f"v_permlane32_swap_b32 v{T[4]}, v{T[5]}")
        A(f"v_add_f32 v{T[4]}, v{T[4]}, v{T[5]}")
        A(f"v_mov_b32 v{T[5]}, v{AK[t]+12}")
        A(f"v_mov_b32 v{T[6]}, v{AK[t]+12}")
        A(f"v_permlane32_swap_b32 v{T[5]}, v{T[6]}")
        A(f"v_mul_f32 v{MEAN[t]}, {f32bits(1.0/448):#x}, v{T[6]}")
        A(f"v_mul_f32 v{T[4]}, {f32bits(1.0/448):#x}, v{T[4]}")
        A(f"v_fma_f32 v{T[4]}, -v{MEAN[t]}, v{MEAN[t]}, v{T[4]}")
        A(f"v_max_f32 v{T[4]}, 0, v{T[4]}")
        A(f"v_add_f32 v{T[4]}, {f32bits(1e-5):#x}, v{T[4]}")
        A(f"v_rsq_f32 v{RSTD[t]}, v{T[4]}")
        A(f"v_sub_f32 v{T[4]}, 0, v{MEAN[t]}")
        A(f"v_cvt_pk_bf16_f32 v{T[5]}, v{T[4]}, v{T[4]}")
        A(f"v_lshlrev_b32 v{T[5]}, 16, v{T[5]}")
        A(f"v_sub_f32 v{T[5]}, v{T[4]}, v{T[5]}")
        A(f"v_cvt_pk_bf16_f32 v{XC[t]}, v{T[4]}, v{T[5]}")
        A(f"v_cndmask_b32 v{XC[t]}, v{XC[t]}, 0, s[{sHI}:{sHI+1}]")
    A(f"s_lshl_b32 s{sT0}, s{sW}, 9")
    A(f"s_add_u32 s{sT0}, s{sT0}, {RS_BASE}")
    A(f"v_lshlrev_b32 v{T[4]}, 2, v{T[0]}")
    A(f"v_add_u32 v{T[4]}, s{sT0}, v{T[4]}")
    for t in range(3):
        A(f"ds_write_b32 v{T[4]}, v{RSTD[t]} offset:{t*128}")
    A(f"v_lshlrev_b32 v{T[5]}, 4, v{T[1]}")
    A(f"v_add_u32 v{T[5]}, s{sT0}, v{T[5]}")
    A("s_waitcnt lgkmcnt(0)")
    A("s_barrier")
    CB = 128
    for seg in range(3):
        A(f"ds_read_b128 v[{CB+8*seg}:{CB+8*seg+3}], v{T[2]} offset:{seg*1024}")
        A(f"ds_read_b128 v[{CB+8*seg+4}:{CB+8*seg+7}], v{T[2]} offset:{seg*1024+16}")
    A("s_waitcnt lgkmcnt(0)")
    WC = [160, 164, 168]
    XCF = [172, 176, 180]
    for seg in range(3):
        b = CB + 8*seg
        for k in (1, 2, 4):
            for j in range(0, 8, 2*k):
                A(f"v_add_f32 v{b+j}, v{b+j}, v{b+j+k}")
        A(f"v_cvt_pk_bf16_f32 v{WC[seg]}, v{b}, v{b}")
        A(f"v_lshlrev_b32 v{b+1}, 16, v{WC[seg]}")
        A(f"v_sub_f32 v{b+1}, v{b}, v{b+1}")
        A(f"v_cvt_pk_bf16_f32 v{WC[seg]+1}, v{b+1}, v{b+1}")
        A(f"v_mov_b32 v{WC[seg]+2}, 0")
        A(f"v_mov_b32 v{WC[seg]+3}, 0")
    for t in range(3):
        A(f"v_mov_b32 v{XCF[t]}, v{XC[t]}")
        A(f"v_mov_b32 v{XCF[t]+1}, v{XC[t]}")
        A(f"v_mov_b32 v{XCF[t]+2}, 0")
        A(f"v_mov_b32 v{XCF[t]+3}, 0")
    f4 = lambda b: f"v[{b}:{b+3}]"
    f16 = lambda b: f"v[{b}:{b+15}]"
    A(f"{MF} {f16(aq)}, {f4(WC[0])}, {f4(XCF[0])}, {f16(aq)}")
    for t in range(3):
        A(f"{MF} {f16(AK[t])}, {f4(WC[1])}, {f4(XCF[t])}, {f16(AK[t])}")
        A(f"{MF} {f16(AV[t])}, {f4(XCF[t])}, {f4(WC[2])}, {f16(AV[t])}")
    A(f"s_lshl_b32 s{sT0}, s{sW}, 12")
    A(f"s_add_u32 s{sT0}, s{sT0}, {KV_BASE}")
    KVW = T[17]
    A(f"v_lshlrev_b32 v{KVW}, 4, v1")
    A(f"v_add_u32 v{KVW}, s{sT0}, v{KVW}")
    JOFF = [8*4096, 0, 4*4096]
    c = (DH ** -0.5) * math.log2(math.e)
    A(f"v_mul_f32 v{T[4]}, {f32bits(c):#x}, v{RSTD[0]}")
    for r in range(16): A(f"v_mul_f32 v{aq+r}, v{aq+r}, v{T[4]}")
    for j in range(8): A(f"v_cvt_pk_bf16_f32 v{QF+j}, v{aq+2*j}, v{aq+2*j+1}")
    for j in (6, 7): A(f"v_cndmask_b32 v{QF+j}, v{QF+j}, 0, s[{sHI}:{sHI+1}]")
    PK = 128
    RB = 136
    A(f"v_cmp_eq_u32 s[{sM1}:{sM1+1}], 28, v{T[0]}")
    A(f"v_mov_b32 v{T[6]}, 0x3f803f80")
    for t in range(3):
        for q in range(4):
            A(f"ds_read_b128 v[{RB+4*q}:{RB+4*q+3}], v{T[5]} offset:{t*128 + q*32}")
        for r in range(16): A(f"v_mul_f32 v{AK[t]+r}, v{AK[t]+r}, v{RSTD[t]}")
        for j in range(8): A(f"v_cvt_pk_bf16_f32 v{PK+j}, v{AK[t]+2*j}, v{AK[t]+2*j+1}")
        for j in (6, 7): A(f"v_cndmask_b32 v{PK+j}, v{PK+j}, 0, s[{sHI}:{sHI+1}]")
        A(f"ds_write_b128 v{KVW}, v[{PK}:{PK+3}] offset:{JOFF[t]}")
        A(f"ds_write_b128 v{KVW}, v[{PK+4}:{PK+7}] offset:{JOFF[t]+1024}")
        A("s_waitcnt lgkmcnt(0)")
        for r in range(16): A(f"v_mul_f32 v{AV[t]+r}, v{AV[t]+r}, v{RB+r}")
        for j in range(8): A(f"v_cvt_pk_bf16_f32 v{PK+j}, v{AV[t]+2*j}, v{AV[t]+2*j+1}")
        for j in range(8): A(f"v_cndmask_b32 v{PK+j}, v{PK+j}, v{T[6]}, s[{sM1}:{sM1+1}]")
        A(f"ds_write_b128 v{KVW}, v[{PK}:{PK+3}] offset:{JOFF[t]+2048}")
        A(f"ds_write_b128 v{KVW}, v[{PK+4}:{PK+7}] offset:{JOFF[t]+3072}")
    A("s_waitcnt lgkmcnt(0)")
    A("s_barrier")
    stamp(A, 31)
    SB = 16
    KF = [160, 168]
    VF = [176, 184]
    OA = 192
    TT = list(range(208, 240))
    sMK = 68 + 0
    sMK = 72
    KVR = KVW
    def kread(i): return [(f"ds_read_b128 v[{KF[i&1]}:{KF[i&1]+3}], v{KVR} offset:{i*4096}", f"k{i}"),
                          (f"ds_read_b128 v[{KF[i&1]+4}:{KF[i&1]+7}], v{KVR} offset:{i*4096+1024}", f"k{i}")]
    for x in kread(0): A(x[0], tag=x[1])
    for i in range(9):
        if i + 1 < 9:
            for x in kread(i+1): A(x[0], tag=x[1])
        A.wait_lg(f"k{i}")
        sb = SB + 16*i
        A(f"{MF} {f16(sb)}, {f4(KF[i&1])}, {f4(QF)}, 0")
        A(f"{MF} {f16(sb)}, {f4(KF[i&1]+4)}, {f4(QF+4)}, {f16(sb)}")
    stamp(A, 32)
    NEG = TT[0]; QQ = TT[1]; MX = TT[2]; MX2 = TT[3]
    A(f"v_mov_b32 v{NEG}, {f32bits(-1e30):#x}")
    A(f"v_and_b32 v{QQ}, 31, v1")
    A(f"v_lshrrev_b32 v{MX}, 5, v1")
    A(f"v_lshlrev_b32 v{MX}, 2, v{MX}")
    A(f"v_sub_u32 v{QQ}, v{QQ}, v{MX}")
    for r in range(16):
        rc = (r & 3) + 8 * (r >> 2)
        sp = 72 + 2 * (r & 3)
        A(f"v_cmp_ge_i32 s[{sp}:{sp+1}], v{QQ}, {rc}")
        if (r & 3) == 3:
            for rr in range(r - 3, r + 1):
                sp2 = 72 + 2 * (rr & 3)
                A(f"v_cndmask_b32 v{SB+16*8+rr}, v{NEG}, v{SB+16*8+rr}, s[{sp2}:{sp2+1}]")
                A(f"v_cndmask_b32 v{SB+rr}, v{SB+rr}, v{NEG}, s[{sp2}:{sp2+1}]")
    A(f"s_lshl_b32 s{sT0}, s{sG}, 2")
    A(f"s_add_u32 s{sT0}, s{sT0}, s{sW}")
    for i in range(8):
        lab = A.newlabel("Linv")
        A(f"s_cmp_ge_u32 s{sT0}, {8 - i}")
        A(f"s_cbranch_scc1 {lab}")
        for r in range(16): A(f"v_mov_b32 v{SB+16*i+r}, v{NEG}")
        A.label(lab)
    A(f"v_max_f32 v{MX}, v{SB}, v{SB+1}")
    A(f"v_max_f32 v{MX2}, v{SB+2}, v{SB+3}")
    for k in range(4, 144, 4):
        A(f"v_max3_f32 v{MX}, v{MX}, v{SB+k}, v{SB+k+1}")
        A(f"v_max3_f32 v{MX2}, v{MX2}, v{SB+k+2}, v{SB+k+3}")
    A(f"v_max_f32 v{MX}, v{MX}, v{MX2}")
    A(f"v_mov_b32 v{MX2}, v{MX}")
    A(f"v_permlane32_swap_b32 v{MX}, v{MX2}")
    A(f"v_max_f32 v{MX}, v{MX}, v{MX2}")
    stamp(A, 33)
    def vread(i): return [(f"ds_read_b128 v[{VF[i&1]}:{VF[i&1]+3}], v{KVR} offset:{i*4096+2048}", f"v{i}"),
                          (f"ds_read_b128 v[{VF[i&1]+4}:{VF[i&1]+7}], v{KVR} offset:{i*4096+3072}", f"v{i}")]
    for x in vread(0): A(x[0], tag=x[1])
    for i in range(9):
        sb = SB + 16*i
        if i + 1 < 9:
            for x in vread(i+1): A(x[0], tag=x[1])
        for r in range(16):
            A(f"v_sub_f32 v{sb+r}, v{sb+r}, v{MX}")
            A(f"v_exp_f32 v{sb+r}, v{sb+r}")
        for j in range(8): A(f"v_cvt_pk_bf16_f32 v{sb+j}, v{sb+2*j}, v{sb+2*j+1}")
        A.wait_lg(f"v{i}")
        cc = "0" if i == 0 else f16(OA)
        A(f"{MF} {f16(OA)}, {f4(VF[i&1])}, {f4(sb)}, {cc}")
        A(f"{MF} {f16(OA)}, {f4(VF[i&1]+4)}, {f4(sb+4)}, {f16(OA)}")
    stamp(A, 34)
    L1, L2 = TT[4], TT[5]
    A(f"v_mov_b32 v{L1}, v{OA+12}")
    A(f"v_mov_b32 v{L2}, v{OA+12}")
    A(f"v_permlane32_swap_b32 v{L1}, v{L2}")
    A(f"v_rcp_f32 v{L2}, v{L2}")
    for r in range(16): A(f"v_mul_f32 v{OA+r}, v{OA+r}, v{L2}")
    for j in range(8): A(f"v_cvt_pk_bf16_f32 v{OA+j}, v{OA+2*j}, v{OA+2*j+1}")
    for j in (6, 7): A(f"v_cndmask_b32 v{OA+j}, v{OA+j}, 0, s[{sHI}:{sHI+1}]")
    A(f"s_lshl_b32 s{sT0}, s{sG}, 3")
    A(f"s_lshl_b32 s{sT1}, s{sW}, 1")
    A(f"s_add_u32 s{sT0}, s{sT0}, s{sT1}")
    A(f"s_lshl_b32 s{sT0}, s{sT0}, 4")
    A(f"s_add_u32 s{sT0}, s{sT0}, s{sR}")
    A(f"s_lshl_b32 s{sT0}, s{sT0}, 10")
    A(f"s_add_u32 s{sT0}, s{sT0}, {WS_O}")
    A(f"v_bfe_u32 v{L1}, v1, 4, 1")
    A(f"v_lshlrev_b32 v{L1}, 14, v{L1}")
    A(f"v_and_b32 v{L2}, 15, v1")
    A(f"v_lshl_add_u32 v{L1}, v{L2}, 4, v{L1}")
    A(f"v_lshrrev_b32 v{L2}, 5, v1")
    A(f"v_lshl_add_u32 v{L1}, v{L2}, 8, v{L1}")
    A(f"buffer_store_dwordx4 v[{OA}:{OA+3}], v{L1}, s[{sWS}:{sWS+3}], s{sT0} offen {sc}")
    A(f"buffer_store_dwordx4 v[{OA+4}:{OA+7}], v{L1}, s[{sWS}:{sWS+3}], s{sT0} offen offset:512 {sc}")
    stamp(A, 35)
    if STAMPS:
        A("s_memrealtime s[98:99]"); A("s_waitcnt lgkmcnt(0)"); A("v_writelane_b32 v255, s98, 41")
    stamp_dump(A, 0)

P2_LDS = 57 * 1024 + 1024
def lane_tr_common(A, vG4, vRR, vC):
    A(f"v_lshrrev_b32 v{vG4}, 4, v1")
    A(f"v_bfe_u32 v{vRR}, v1, 2, 2")
    A(f"v_and_b32 v{vC}, 3, v1")

def dma128_voff(A, dst, t0, t1, t2, sCOL):
    A(f"v_lshrrev_b32 v{t0}, 3, v1")
    A(f"v_and_b32 v{t1}, 7, v1")
    A(f"v_bfe_u32 v{t2}, v{t0}, 1, 2")
    A(f"v_lshlrev_b32 v{t2}, 1, v{t2}")
    A(f"v_xor_b32 v{t1}, v{t1}, v{t2}")
    A(f"v_lshlrev_b32 v{t1}, 4, v{t1}")
    A(f"v_mul_u32_u24 v{t0}, 896, v{t0}")
    A(f"v_add3_u32 v{dst}, v{t0}, v{t1}, s{sCOL}")

def p2(A, sc="", standalone=True):
    name = "p2"
    done = A.newlabel("Lp2done")
    A(f"s_cmp_ge_u32 s{sR}, 14")
    A(f"s_cbranch_scc1 {done}")
    sTH, sCS, sTT, sCOL = 77, 78, 79, 80
    A(f"s_and_b32 s{sTH}, s{sR}, 1")
    A(f"s_lshr_b32 s{sCS}, s{sR}, 1")
    A(f"s_lshl_b32 s{sCOL}, s{sCS}, 7")
    A(f"s_lshl_b32 s{sTT}, s{sG}, 3")
    A(f"s_lshl_b32 s{sT0}, s{sTH}, 2")
    A(f"s_add_u32 s{sTT}, s{sTT}, s{sT0}")
    A(f"s_add_u32 s{sTT}, s{sTT}, s{sW}")
    T = list(range(2, 16))
    vDW = 16; vA = [17, 18, 19, 20]; vL16 = 21
    OF = 32
    ACC = 96
    WF = 112
    XR = 144
    dma128_voff(A, vDW, T[0], T[1], T[2], sCOL)
    A(f"s_mul_i32 s{sT1}, s{sW}, 7168")
    A(f"s_lshl_b32 s{sT2}, s{sW}, 10")
    for k in range(15):
        lab = None
        if k == 14:
            lab = A.newlabel("Lw")
            A(f"s_cmp_ge_u32 s{sW}, 1"); A(f"s_cbranch_scc1 {lab}")
        A(f"s_add_u32 s{sT0}, s{sT1}, {k*4*7168}")
        A(f"s_add_u32 m0, s{sT2}, {k*4096}")
        A(f"buffer_load_dwordx4 v{vDW}, s[{sWO}:{sWO+3}], s{sT0} offen lds", tag="wo")
        if lab: A.label(lab)
    A(f"v_lshlrev_b32 v{vL16}, 4, v1")
    A(f"s_lshl_b32 s{sT0}, s{sTT}, 14")
    A(f"s_add_u32 s{sT0}, s{sT0}, {WS_O}")
    for hd in range(16):
        if hd % 4 == 0 and hd: A(f"s_add_u32 s{sT0}, s{sT0}, 4096")
        A(f"buffer_load_dwordx4 v[{OF+4*hd}:{OF+4*hd+3}], v{vL16}, s[{sWS}:{sWS+3}], s{sT0} offen offset:{(hd%4)*1024} {sc}", tag=f"o{hd}")
    G4, RR, C = T[3], T[4], T[5]
    lane_tr_common(A, G4, RR, C)
    A(f"v_and_b32 v{T[6]}, 15, v1")
    A(f"s_lshl_b32 s{sT0}, s{sTT}, 4")
    A(f"v_add_u32 v{T[6]}, s{sT0}, v{T[6]}")
    A(f"v_mul_u32_u24 v{T[7]}, 896, v{T[6]}")
    A(f"v_lshl_add_u32 v{T[7]}, v{G4}, 3, v{T[7]}")
    for i in range(4):
        A(f"buffer_load_dwordx2 v[{XR+2*i}:{XR+2*i+1}], v{T[7]}, s[{sX}:{sX+3}], s{sCOL} offen offset:{32*i}", tag="xr")
    A(f"v_lshrrev_b32 v{T[8]}, 1, v{G4}")
    A(f"v_lshlrev_b32 v{T[8]}, 4, v{T[8]}")
    A(f"v_and_b32 v{T[9]}, 1, v{G4}")
    A(f"v_lshl_add_u32 v{T[8]}, v{T[9]}, 2, v{T[8]}")
    A(f"v_add_u32 v{T[8]}, v{T[8]}, v{RR}")
    A(f"v_lshlrev_b32 v{T[8]}, 7, v{T[8]}")
    A(f"v_lshl_add_u32 v{T[8]}, v{C}, 3, v{T[8]}")
    A(f"v_lshrrev_b32 v{T[10]}, 1, v{RR}")
    A(f"v_lshl_add_u32 v{T[9]}, v{T[9]}, 1, v{T[10]}")
    for i in range(4):
        A(f"v_xor_b32 v{T[10]}, {i}, v{T[9]}")
        A(f"v_lshl_add_u32 v{vA[i]}, v{T[10]}, 5, v{T[8]}")
    A.wait_vm("wo")
    A("s_barrier")
    M16 = "v_mfma_f32_16x16x32_bf16"
    def wreads(hd):
        out = []
        for i in range(4):
            for u in range(2):
                b = WF + (hd & 1)*16 + 4*i + 2*u
                out.append((f"ds_read_b64_tr_b16 v[{b}:{b+1}], v{vA[i ^ (2*(hd&1))]} offset:{(28*hd + 8*u)*128}", f"w{hd}"))
        return out
    for x in wreads(0): A(x[0], tag=x[1])
    for hd in range(16):
        if hd + 1 < 16:
            for x in wreads(hd+1): A(x[0], tag=x[1])
        A.wait_lg(f"w{hd}")
        A.wait_vm(f"o{hd}")
        for i in range(4):
            b = WF + (hd & 1)*16 + 4*i
            cc = "0" if hd == 0 else f"v[{ACC+4*i}:{ACC+4*i+3}]"
            A(f"{M16} v[{ACC+4*i}:{ACC+4*i+3}], v[{b}:{b+3}], v[{OF+4*hd}:{OF+4*hd+3}], {cc}")
    A.wait_vm("xr")
    SUM, SQ = T[11], T[12]
    XU = 152
    for i in range(4):
        for d in range(2):
            A(f"v_lshlrev_b32 v{XU}, 16, v{XR+2*i+d}")
            A(f"v_and_b32 v{XU+1}, 0xffff0000, v{XR+2*i+d}")
            A(f"v_add_f32 v{ACC+4*i+2*d}, v{ACC+4*i+2*d}, v{XU}")
            A(f"v_add_f32 v{ACC+4*i+2*d+1}, v{ACC+4*i+2*d+1}, v{XU+1}")
    A(f"v_mov_b32 v{SUM}, v{ACC}")
    A(f"v_mul_f32 v{SQ}, v{ACC}, v{ACC}")
    for r in range(1, 16):
        A(f"v_add_f32 v{SUM}, v{SUM}, v{ACC+r}")
        A(f"v_fmac_f32 v{SQ}, v{ACC+r}, v{ACC+r}")
    HP = 156
    for j in range(8): A(f"v_cvt_pk_bf16_f32 v{HP+j}, v{ACC+2*j}, v{ACC+2*j+1}")
    A(f"s_mul_i32 s{sT0}, s{sTT}, 14")
    A(f"s_lshl_b32 s{sT1}, s{sCS}, 1")
    A(f"s_add_u32 s{sT0}, s{sT0}, s{sT1}")
    A(f"s_lshl_b32 s{sT0}, s{sT0}, 10")
    A(f"s_add_u32 s{sT0}, s{sT0}, {WS_H}")
    A(f"buffer_store_dwordx4 v[{HP}:{HP+3}], v{vL16}, s[{sWS}:{sWS+3}], s{sT0} offen {sc}")
    A(f"buffer_store_dwordx4 v[{HP+4}:{HP+7}], v{vL16}, s[{sWS}:{sWS+3}], s{sT0} offen offset:1024 {sc}")
    for v in (SUM, SQ):
        for sw in ("v_permlane32_swap_b32", "v_permlane16_swap_b32"):
            A(f"v_mov_b32 v{XU}, v{v}")
            A(f"{sw} v{v}, v{XU}")
            A(f"v_add_f32 v{v}, v{v}, v{XU}")
    A(f"v_mov_b32 v{XU}, v{SUM}")
    A(f"v_mov_b32 v{XU+1}, v{SQ}")
    A(f"s_lshl_b32 s{sT0}, s{sCS}, 14")
    A(f"s_add_u32 s{sT0}, s{sT0}, {WS_ST}")
    A(f"v_lshlrev_b32 v{T[6]}, 3, v{T[6]}")
    A("s_mov_b64 exec, 0xffff")
    A(f"buffer_store_dwordx2 v[{XU}:{XU+1}], v{T[6]}, s[{sWS}:{sWS+3}], s{sT0} offen {sc}")
    A("s_mov_b64 exec, -1")
    A.label(done)

P3_W = 448 * 224
P3_CS = P3_W
P3_LDS = P3_W + 2048
def p3(A, sc=""):
    T = list(range(2, 16))
    vO = list(range(16, 23))
    vA = [23, 24]; vL16 = 25
    HF = 32
    ACC = 144
    WF = 200
    B1 = 228
    ONES_A = 0
    sTT, sSO = 77, 78
    M16 = "v_mfma_f32_16x16x32_bf16"; MS = "v_mfma_f32_4x4x4_16b_bf16"
    A(f"s_lshl_b32 s{sTT}, s{sG}, 3")
    A(f"s_lshl_b32 s{sT0}, s{sW}, 1")
    A(f"s_add_u32 s{sTT}, s{sTT}, s{sT0}")
    for p in range(7):
        A(f"v_add_u32 v{T[0]}, {64*p}, v1")
        A(f"v_mul_u32_u24 v{T[1]}, 18725, v{T[0]}")
        A(f"v_lshrrev_b32 v{T[1]}, 18, v{T[1]}")
        A(f"v_mul_u32_u24 v{T[2]}, 14, v{T[1]}")
        A(f"v_sub_u32 v{T[2]}, v{T[0]}, v{T[2]}")
        A(f"v_mul_u32_u24 v{T[1]}, 3584, v{T[1]}")
        A(f"v_lshl_add_u32 v{vO[p]}, v{T[2]}, 4, v{T[1]}")
    A(f"s_mul_i32 s{sSO}, s{sR}, 224")
    A(f"s_mul_i32 s{sT1}, s{sW}, {32*3584}")
    A(f"s_add_u32 s{sSO}, s{sSO}, s{sT1}")
    A(f"s_mul_i32 s{sT2}, s{sW}, 7168")
    for k in range(4):
        lab = None
        if k == 3:
            lab = A.newlabel("Lw")
            A(f"s_cmp_ge_u32 s{sW}, 2"); A(f"s_cbranch_scc1 {lab}")
        A(f"s_add_u32 s{sT0}, s{sSO}, {k*4*32*3584}")
        for p in range(7):
            A(f"s_add_u32 m0, s{sT2}, {k*4*7168 + p*1024}")
            A(f"buffer_load_dwordx4 v{vO[p]}, s[{sW1}:{sW1+3}], s{sT0} offen lds", tag="w1")
        if lab: A.label(lab)
    A("s_waitcnt vmcnt(0)")
    A.vm = []
    A(f"v_lshlrev_b32 v{vL16}, 4, v1")
    A(f"s_mul_i32 s{sT0}, s{sTT}, {14*1024}")
    A(f"s_add_u32 s{sT0}, s{sT0}, {WS_H}")
    for ks in range(14):
        for t in range(2):
            off = (t*14 + ks) * 1024
            A(f"s_add_u32 s{sT1}, s{sT0}, {off & ~4095}")
            A(f"buffer_load_dwordx4 v[{HF+(ks*2+t)*4}:{HF+(ks*2+t)*4+3}], v{vL16}, s[{sWS}:{sWS+3}], s{sT1} offen offset:{off & 4095} {sc}", tag=f"h{ks}")
    G4, RR, C = T[3], T[4], T[5]
    lane_tr_common(A, G4, RR, C)
    ST = 200
    A(f"v_and_b32 v{T[6]}, 15, v1")
    A(f"s_lshl_b32 s{sT1}, s{sTT}, 4")
    A(f"v_add_u32 v{T[6]}, s{sT1}, v{T[6]}")
    A(f"v_lshlrev_b32 v{T[6]}, 3, v{T[6]}")
    for cs in range(7):
        A(f"s_mov_b32 s{sT1}, {WS_ST + cs*16384}")
        for t in range(2):
            A(f"buffer_load_dwordx2 v[{ST+t*14+2*cs}:{ST+t*14+2*cs+1}], v{T[6]}, s[{sWS}:{sWS+3}], s{sT1} offen offset:{128*t} {sc}", tag="st")
    BR = 240
    A(f"v_lshlrev_b32 v{T[7]}, 3, v{G4}")
    A(f"s_mul_i32 s{sT1}, s{sR}, 224")
    for i in range(7):
        A(f"buffer_load_dwordx2 v[{BR+2*i}:{BR+2*i+1}], v{T[7]}, s[{sB1}:{sB1+3}], s{sT1} offen offset:{32*i}", tag="b1")
    A(f"v_lshl_add_u32 v{T[8]}, v{G4}, 2, v{RR}")
    A(f"v_mul_u32_u24 v{T[8]}, 224, v{T[8]}")
    A(f"v_lshl_add_u32 v{vA[0]}, v{C}, 3, v{T[8]}")
    A(f"v_add_u32 v{vA[1]}, {8*32*224}, v{vA[0]}")
    A.wait_vm("st")
    MEAN = [T[9], T[10]]; RSTD = [T[11], T[12]]; XC = [26, 27]
    for t in range(2):
        b = ST + 14*t
        for cs in range(1, 7):
            A(f"v_add_f32 v{b}, v{b}, v{b+2*cs}")
            A(f"v_add_f32 v{b+1}, v{b+1}, v{b+2*cs+1}")
        A(f"v_mul_f32 v{MEAN[t]}, {f32bits(1.0/448):#x}, v{b}")
        A(f"v_mul_f32 v{b+1}, {f32bits(1.0/448):#x}, v{b+1}")
        A(f"v_fma_f32 v{b+1}, -v{MEAN[t]}, v{MEAN[t]}, v{b+1}")
        A(f"v_max_f32 v{b+1}, 0, v{b+1}")
        A(f"v_add_f32 v{b+1}, {f32bits(1e-5):#x}, v{b+1}")
        A(f"v_rsq_f32 v{RSTD[t]}, v{b+1}")
        A(f"v_sub_f32 v{b}, 0, v{MEAN[t]}")
        A(f"v_cvt_pk_bf16_f32 v{b+1}, v{b}, v{b}")
        A(f"v_lshlrev_b32 v{b+1}, 16, v{b+1}")
        A(f"v_sub_f32 v{b+1}, v{b}, v{b+1}")
        A(f"v_cvt_pk_bf16_f32 v{XC[t]}, v{b}, v{b+1}")
    A(f"v_cmp_lt_u32 s[80:81], 15, v1")
    for t in range(2):
        A(f"v_cndmask_b32 v{XC[t]}, v{XC[t]}, 0, s[80:81]")
    A.wait_vm("b1")
    BU = 0
    for i in range(7):
        for d in range(2):
            A(f"v_lshlrev_b32 v{T[13]}, 16, v{BR+2*i+d}")
            A(f"v_accvgpr_write_b32 a{BU+4*i+2*d}, v{T[13]}")
            A(f"v_and_b32 v{T[13]}, 0xffff0000, v{BR+2*i+d}")
            A(f"v_accvgpr_write_b32 a{BU+4*i+2*d+1}, v{T[13]}")
    ONES = 28
    A(f"v_mov_b32 v{ONES}, 0x3f803f80")
    A(f"v_mov_b32 v{ONES+1}, 0x3f803f80")
    CS = 228
    for r in range(CS, CS+28): A(f"v_mov_b32 v{r}, 0")
    A("s_barrier")
    def wreads(ks):
        out = []
        for i in range(7):
            for u in range(2):
                base = 0 if ks < 8 else 1
                off = (32*ks + 16*u - (256 if base else 0)) * 224 + 32*i
                b = WF + 4*i + 2*u
                out.append((f"ds_read_b64_tr_b16 v[{b}:{b+1}], v{vA[base]} offset:{off}", f"w{ks}_{i}"))
        return out
    for x in wreads(0): A(x[0], tag=x[1])
    for ks in range(14):
        A.wait_vm(f"h{ks}")
        nxt = wreads(ks+1) if ks + 1 < 14 else []
        lab = None
        for i in range(7):
            A.wait_lg(f"w{ks}_{i}")
            b = WF + 4*i
            for t in range(2):
                a = ACC + (i*2+t)*4
                cc = "0" if ks == 0 else f"v[{a}:{a+3}]"
                A(f"{M16} v[{a}:{a+3}], v[{b}:{b+3}], v[{HF+(ks*2+t)*4}:{HF+(ks*2+t)*4+3}], {cc}")
            lab = A.newlabel("Lcs")
            A(f"s_cmp_lg_u32 s{sW}, {ks & 3}")
            A(f"s_cbranch_scc1 {lab}")
            A(f"{MS} v[{CS+4*i}:{CS+4*i+3}], v[{b}:{b+1}], v[{ONES}:{ONES+1}], v[{CS+4*i}:{CS+4*i+3}]")
            A(f"s_nop 1")
            A(f"{MS} v[{CS+4*i}:{CS+4*i+3}], v[{b+2}:{b+3}], v[{ONES}:{ONES+1}], v[{CS+4*i}:{CS+4*i+3}]")
            A.label(lab)
            if nxt:
                for x in nxt[2*i:2*i+2]: A(x[0], tag=x[1])
    A(f"v_cmp_eq_u32 s[82:83], 1, v{C}")
    A(f"v_cmp_eq_u32 s[84:85], 2, v{C}")
    A(f"v_cmp_eq_u32 s[86:87], 3, v{C}")
    A(f"v_and_b32 v{T[0]}, 15, v1")
    A(f"v_lshlrev_b32 v{T[0]}, 4, v{T[0]}")
    A(f"v_add_u32 v{T[0]}, {P3_CS}, v{T[0]}")
    A(f"s_lshl_b32 s{sT0}, s{sW}, 2")
    A(f"v_add_u32 v{T[1]}, s{sT0}, v{T[0]}")
    for i in range(7):
        b = CS + 4*i
        A(f"v_cndmask_b32 v{b}, v{b}, v{b+1}, s[82:83]")
        A(f"v_cndmask_b32 v{b}, v{b}, v{b+2}, s[84:85]")
        A(f"v_cndmask_b32 v{b}, v{b}, v{b+3}, s[86:87]")
        for sw in ("v_permlane32_swap_b32", "v_permlane16_swap_b32"):
            A(f"v_mov_b32 v{b+1}, v{b}")
            A(f"{sw} v{b}, v{b+1}")
            A(f"v_add_f32 v{b}, v{b}, v{b+1}")
        A(f"ds_write_b32 v{T[1]}, v{b} offset:{256*i}")
    A("s_waitcnt lgkmcnt(0)")
    A("s_barrier")
    for i in range(7):
        A(f"ds_read_b128 v[{CS+4*i}:{CS+4*i+3}], v{T[0]} offset:{256*i}")
    A("s_waitcnt lgkmcnt(0)")
    XF = [WF, WF+4]
    for t in range(2):
        A(f"v_mov_b32 v{XF[t]}, v{XC[t]}")
        A(f"v_mov_b32 v{XF[t]+1}, v{XC[t]}")
        A(f"v_mov_b32 v{XF[t]+2}, 0")
        A(f"v_mov_b32 v{XF[t]+3}, 0")
    for i in range(7):
        b = CS + 4*i
        A(f"v_add_f32 v{b}, v{b}, v{b+1}")
        A(f"v_add_f32 v{b+2}, v{b+2}, v{b+3}")
        A(f"v_add_f32 v{b}, v{b}, v{b+2}")
        A(f"v_cvt_pk_bf16_f32 v{b+1}, v{b}, v{b}")
        A(f"v_lshlrev_b32 v{b+2}, 16, v{b+1}")
        A(f"v_sub_f32 v{b+2}, v{b}, v{b+2}")
        A(f"v_cvt_pk_bf16_f32 v{b+2}, v{b+2}, v{b+2}")
        A(f"v_mov_b32 v{b}, v{b+1}")
        A(f"v_mov_b32 v{b+1}, v{b+2}")
        A(f"v_mov_b32 v{b+2}, 0")
        A(f"v_mov_b32 v{b+3}, 0")
        for t in range(2):
            a = ACC + (i*2+t)*4
            A(f"{M16} v[{a}:{a+3}], v[{b}:{b+3}], v[{XF[t]}:{XF[t]+3}], v[{a}:{a+3}]")
    A(f"s_mul_i32 s{sT2}, s{sR}, 7")
    BT = 208
    for i in range(7):
        for j in range(4): A(f"v_accvgpr_read_b32 v{BT+j}, a{BU+4*i+j}")
        A(f"s_add_u32 s{sT0}, s{sT2}, {i}")
        A(f"s_lshr_b32 s{sT1}, s{sT0}, 1")
        A(f"s_and_b32 s{sT0}, s{sT0}, 1")
        A(f"s_lshl_b32 s{sT1}, s{sT1}, 10")
        A(f"s_lshl_b32 s{sT0}, s{sT0}, 3")
        A(f"s_add_u32 s{sT0}, s{sT0}, s{sT1}")
        A(f"s_mul_i32 s{sT1}, s{sTT}, {56*1024}")
        A(f"s_add_u32 s{sT0}, s{sT0}, s{sT1}")
        A(f"s_add_u32 s{sT0}, s{sT0}, {WS_HID}")
        for t in range(2):
            a = ACC + (i*2+t)*4
            for j in range(4):
                A(f"v_fma_f32 v{a+j}, v{a+j}, v{RSTD[t]}, v{BT+j}")
                A(f"v_max_f32 v{a+j}, 0, v{a+j}")
                A(f"v_mul_f32 v{a+j}, v{a+j}, v{a+j}")
            A(f"v_cvt_pk_bf16_f32 v{a}, v{a}, v{a+1}")
            A(f"v_cvt_pk_bf16_f32 v{a+1}, v{a+2}, v{a+3}")
            if t == 1: A(f"s_add_u32 s{sT0}, s{sT0}, {56*1024}")
            A(f"buffer_store_dwordx2 v[{a}:{a+1}], v{vL16}, s[{sWS}:{sWS+3}], s{sT0} offen {sc}")

P4_LDS = 65536
def p4(A, sc=""):
    done = A.newlabel("Lp4done")
    A(f"s_cmp_ge_u32 s{sR}, 14")
    A(f"s_cbranch_scc1 {done}")
    sTH, sCS, sTT, sCOL, sST = 77, 78, 79, 80, 81
    A(f"s_and_b32 s{sTH}, s{sR}, 1")
    A(f"s_lshr_b32 s{sCS}, s{sR}, 1")
    A(f"s_lshl_b32 s{sCOL}, s{sCS}, 7")
    A(f"s_lshl_b32 s{sTT}, s{sG}, 3")
    A(f"s_lshl_b32 s{sT0}, s{sTH}, 2")
    A(f"s_add_u32 s{sTT}, s{sTT}, s{sT0}")
    A(f"s_lshl_b32 s{sST}, s{sW}, 14")
    T = list(range(2, 16))
    vDW = 16; vA = [17, 18, 19, 20]; vL16 = 21
    ACC = 32
    BF = 96
    NB = 32
    M16 = "v_mfma_f32_16x16x32_bf16"
    dma128_voff(A, vDW, T[0], T[1], T[2], sCOL)
    G4, RR, C = T[3], T[4], T[5]
    lane_tr_common(A, G4, RR, C)
    A(f"v_lshl_add_u32 v{T[8]}, v{G4}, 2, v{RR}")
    A(f"v_lshlrev_b32 v{T[8]}, 7, v{T[8]}")
    A(f"v_lshl_add_u32 v{T[8]}, v{C}, 3, v{T[8]}")
    A(f"v_add_u32 v{T[8]}, s{sST}, v{T[8]}")
    A(f"v_and_b32 v{T[9]}, 1, v{G4}")
    A(f"v_lshrrev_b32 v{T[10]}, 1, v{RR}")
    A(f"v_lshl_add_u32 v{T[9]}, v{T[9]}, 1, v{T[10]}")
    for i in range(4):
        A(f"v_xor_b32 v{T[10]}, {i}, v{T[9]}")
        A(f"v_lshl_add_u32 v{vA[i]}, v{T[10]}, 5, v{T[8]}")
    A(f"v_lshlrev_b32 v{vL16}, 4, v1")
    A(f"s_mul_i32 s{sT1}, s{sW}, {448*896}")
    def w2_dma(ks0, n):
        for ks in range(ks0, ks0+n):
            for m in range(4):
                A(f"s_add_u32 s{sT0}, s{sT1}, {(ks*32 + m*8)*896}")
                A(f"s_add_u32 m0, s{sST}, {((ks-ks0)*4 + m)*1024}")
                A(f"buffer_load_dwordx4 v{vDW}, s[{sW2}:{sW2+3}], s{sT0} offen lds", tag=f"w2_{ks}")
    def w2_read(ks0, n):
        for ks in range(ks0, ks0+n):
            A.wait_vm(f"w2_{ks}")
            for i in range(4):
                for u in range(2):
                    a = (ks*4+i)*4 + 2*u
                    A(f"ds_read_b64_tr_b16 a[{a}:{a+1}], v{vA[i]} offset:{((ks-ks0)*32 + 16*u)*128}")
    pieces = [(0, 4), (4, 4), (8, 4), (12, 2)]
    for (k0, n) in pieces:
        w2_dma(k0, n)
        w2_read(k0, n)
        A("s_waitcnt lgkmcnt(0)")
    A(f"s_mul_i32 s{sT1}, s{sTT}, {56*1024}")
    A(f"s_mul_i32 s{sT2}, s{sW}, {14*1024}")
    A(f"s_add_u32 s{sT1}, s{sT1}, s{sT2}")
    A(f"s_add_u32 s{sT1}, s{sT1}, {WS_HID}")
    def bload(q):
        ks, tt = q // 4, q % 4
        off = tt*56*1024 + ks*1024
        slot = q % NB
        A(f"s_add_u32 s{sT0}, s{sT1}, {off}")
        A(f"buffer_load_dwordx4 v[{BF+4*slot}:{BF+4*slot+3}], v{vL16}, s[{sWS}:{sWS+3}], s{sT0} offen {sc}", tag=f"b{q}")
    for q in range(NB): bload(q)
    HR = 224
    B2 = 232
    A(f"s_add_u32 s{sT0}, s{sTT}, s{sW}")
    A(f"s_mul_i32 s{sT0}, s{sT0}, 14")
    A(f"s_lshl_b32 s{sT2}, s{sCS}, 1")
    A(f"s_add_u32 s{sT0}, s{sT0}, s{sT2}")
    A(f"s_lshl_b32 s{sT0}, s{sT0}, 10")
    A(f"s_add_u32 s{sT0}, s{sT0}, {WS_H}")
    A(f"buffer_load_dwordx4 v[{HR}:{HR+3}], v{vL16}, s[{sWS}:{sWS+3}], s{sT0} offen {sc}", tag="hr")
    A(f"buffer_load_dwordx4 v[{HR+4}:{HR+7}], v{vL16}, s[{sWS}:{sWS+3}], s{sT0} offen offset:1024 {sc}", tag="hr")
    A(f"v_lshlrev_b32 v{T[11]}, 3, v{G4}")
    for i in range(4):
        A(f"buffer_load_dwordx2 v[{B2+2*i}:{B2+2*i+1}], v{T[11]}, s[{sB2}:{sB2+3}], s{sCOL} offen offset:{32*i}", tag="hr")
    for q in range(56):
        ks, tt = q // 4, q % 4
        slot = q % NB
        A.wait_vm(f"b{q}")
        for i in range(4):
            a = ACC + (tt*4+i)*4
            cc = "0" if ks == 0 else f"v[{a}:{a+3}]"
            wa = (ks*4+i)*4
            A(f"{M16} v[{a}:{a+3}], a[{wa}:{wa+3}], v[{BF+4*slot}:{BF+4*slot+3}], {cc}")
        if q + NB < 56: bload(q + NB)
    A("s_barrier")
    A(f"v_add_u32 v{T[0]}, s{sST}, v{vL16}")
    for tt in range(4):
        for i in range(4):
            a = ACC + (tt*4+i)*4
            A(f"ds_write_b128 v{T[0]}, v[{a}:{a+3}] offset:{(tt*4+i)*1024}")
    A("s_waitcnt lgkmcnt(0)")
    A("s_barrier")
    A(f"s_lshl_b32 s{sT0}, s{sW}, 12")
    A(f"v_add_u32 v{T[0]}, s{sT0}, v{vL16}")
    RB = 96
    for w2 in range(4):
        for i in range(4):
            A(f"ds_read_b128 v[{RB+(w2*4+i)*4}:{RB+(w2*4+i)*4+3}], v{T[0]} offset:{w2*16384 + i*1024}")
    A("s_waitcnt lgkmcnt(0)")
    A.wait_vm("hr")
    for i in range(4):
        for j in range(4):
            r = RB + 4*i + j
            A(f"v_add_f32 v{r}, v{r}, v{r+16}")
            A(f"v_add_f32 v{r+32}, v{r+32}, v{r+48}")
            A(f"v_add_f32 v{r}, v{r}, v{r+32}")
        for d in range(2):
            for src in (HR, B2):
                A(f"v_lshlrev_b32 v{T[1]}, 16, v{src+2*i+d}")
                A(f"v_and_b32 v{T[2]}, 0xffff0000, v{src+2*i+d}")
                A(f"v_add_f32 v{RB+4*i+2*d}, v{RB+4*i+2*d}, v{T[1]}")
                A(f"v_add_f32 v{RB+4*i+2*d+1}, v{RB+4*i+2*d+1}, v{T[2]}")
    PKD = 176
    for i in range(4):
        A(f"v_cvt_pk_bf16_f32 v{PKD+2*i}, v{RB+4*i}, v{RB+4*i+1}")
        A(f"v_cvt_pk_bf16_f32 v{PKD+2*i+1}, v{RB+4*i+2}, v{RB+4*i+3}")
    for pr in range(2):
        b = PKD + 4*pr
        A(f"v_permlane16_swap_b32 v{b}, v{b+2}")
        A(f"v_permlane16_swap_b32 v{b+1}, v{b+3}")
    A(f"s_add_u32 s{sT0}, s{sTT}, s{sW}")
    A(f"s_lshl_b32 s{sT0}, s{sT0}, 4")
    A(f"v_and_b32 v{T[1]}, 15, v1")
    A(f"v_add_u32 v{T[1]}, s{sT0}, v{T[1]}")
    A(f"v_mul_u32_u24 v{T[1]}, 896, v{T[1]}")
    A(f"v_and_b32 v{T[2]}, 1, v{G4}")
    A(f"v_lshl_add_u32 v{T[1]}, v{T[2]}, 5, v{T[1]}")
    A(f"v_lshrrev_b32 v{T[2]}, 1, v{G4}")
    A(f"v_lshl_add_u32 v{T[1]}, v{T[2]}, 4, v{T[1]}")
    for pr in range(2):
        b = PKD + 4*pr
        A(f"buffer_store_dwordx4 v[{b}:{b+3}], v{T[1]}, s[{sOUT}:{sOUT+3}], s{sCOL} offen offset:{64*pr}")
    A.label(done)

def build(path):
    out = HDR
    kernels = [("k1_kernel", p1, P1_LDS, True), ("k2_kernel", p2, P2_LDS, True), ("k3_kernel", p3, P3_LDS, True), ("k4_kernel", p4, P4_LDS, True)]
    for n, f, lds, _ in kernels:
        out += f"; @launch kernel={n} grid=(256,1,1) block=(256,1,1) lds={lds}\n"
    out += '.amdgcn_target "amdgcn-amd-amdhsa--gfx950"\n.text\n'
    for n, f, lds, _ in kernels:
        A = Asm()
        prologue(A, n)
        f(A)
        A.label(f"{n}_done")
        A("s_endpgm")
        out += A.text()
        out += kd(n, 512, 256)
        print(n, "lines", len(A.lines), "nops", A.nop_count, file=sys.stderr)
    open(path, "w").write(out)

if __name__ == "__main__":
    if "--nomfma" in sys.argv:
        NOMFMA = True; sys.argv.remove("--nomfma")
    if "--nodma" in sys.argv:
        NODMA = True; sys.argv.remove("--nodma")
    if "--stamps" in sys.argv:
        STAMPS = True; sys.argv.remove("--stamps")
    build(sys.argv[1] if len(sys.argv) > 1 else "cur.s")
```

```python
import re

REG_RE = re.compile(r'^([vas])(\d+)$')
RNG_RE = re.compile(r'^([vas])\[(\d+):(\d+)\]$')

def parse_reg(tok):
    tok = tok.strip()
    neg = tok.startswith('-')
    if neg: tok = tok[1:]
    if tok.startswith('abs(') and tok.endswith(')'): tok = tok[4:-1]
    if tok.startswith('|') and tok.endswith('|'): tok = tok[1:-1]
    m = REG_RE.match(tok)
    if m: return {(m.group(1), int(m.group(2)))}
    m = RNG_RE.match(tok)
    if m: return {(m.group(1), i) for i in range(int(m.group(2)), int(m.group(3)) + 1)}
    if tok == 'vcc': return {('s', 'vcc')}
    if tok in ('vcc_lo', 'vcc_hi'): return {('s', 'vcc')}
    if tok == 'exec': return {('s', 'exec')}
    if tok == 'm0': return {('s', 'm0')}
    return set()

def mfma_passes(op):
    if '32x32x16' in op or '32x32x8' in op: return 8
    if '16x16x32' in op or '16x16x16' in op: return 4
    if '4x4x4' in op: return 2
    raise ValueError(op)

TRANS = ('v_exp_f32', 'v_log_f32', 'v_rcp_f32', 'v_rsq_f32', 'v_sqrt_f32', 'v_sin_f32', 'v_cos_f32')

class Ins:
    __slots__ = ('text', 'op', 'kind', 'wr', 'rd', 'passes', 'srcC', 'srcAB', 'is_nop', 'nops', 'dpp', 'store_data', 'lds_dma')

def split_ops(rest):
    out, depth, cur = [], 0, ''
    for ch in rest:
        if ch == '[' or ch == '(': depth += 1
        if ch == ']' or ch == ')': depth -= 1
        if ch == ',' and depth == 0:
            out.append(cur.strip()); cur = ''
        else:
            cur += ch
    if cur.strip(): out.append(cur.strip())
    return out

def analyze(text):
    I = Ins(); I.text = text
    t = text.split(';')[0].split('//')[0].strip()
    parts = t.split(None, 1)
    op = parts[0]; rest = parts[1] if len(parts) > 1 else ''
    I.op = op; I.wr = set(); I.rd = set(); I.passes = 0; I.srcC = set(); I.srcAB = set(); I.nops = 1
    I.dpp = False; I.store_data = set(); I.lds_dma = False
    ops = split_ops(rest)
    mods = ''
    if ops:
        last = ops[-1].split()
        if len(last) > 1:
            ops[-1] = last[0]; mods = ' '.join(last[1:])
    if op == 's_nop':
        I.kind = 'nop'; I.nops = int(ops[0]) + 1; return I
    if op.startswith('v_mfma'):
        I.kind = 'mfma'; I.passes = mfma_passes(op)
        I.wr = parse_reg(ops[0]); I.srcAB = parse_reg(ops[1]) | parse_reg(ops[2]); I.srcC = parse_reg(ops[3])
        I.rd = I.srcAB | I.srcC
        return I
    if op.startswith('v_'):
        I.kind = 'valu'
        if 'dpp' in op or 'row_' in mods or 'quad_perm' in mods: I.dpp = True
        if op.startswith('v_cmp'):
            I.wr = parse_reg(ops[0])
            for o in ops[1:]: I.rd |= parse_reg(o)
            if op.startswith('v_cmpx'): I.wr |= {('s', 'exec')}
        elif op.startswith('v_permlane') and 'swap' in op:
            r = parse_reg(ops[0]) | parse_reg(ops[1]); I.wr = set(r); I.rd = set(r); I.kind = 'permlane'
        elif op in ('v_add_co_u32', 'v_sub_co_u32', 'v_addc_co_u32', 'v_subb_co_u32', 'v_subrev_co_u32'):
            I.wr = parse_reg(ops[0]) | parse_reg(ops[1])
            for o in ops[2:]: I.rd |= parse_reg(o)
        else:
            I.wr = parse_reg(ops[0])
            for o in ops[1:]: I.rd |= parse_reg(o)
            if op.startswith(('v_fmac', 'v_dot2c', 'v_mac', 'v_writelane')): I.rd |= I.wr
        return I
    if op.startswith('ds_'):
        I.kind = 'ds'
        if op.startswith('ds_read') or op.startswith('ds_bpermute') or op.startswith('ds_swizzle') or op.startswith('ds_permute'):
            I.wr = parse_reg(ops[0])
            for o in ops[1:]: I.rd |= parse_reg(o)
        else:
            for o in ops: I.rd |= parse_reg(o)
        return I
    if op.startswith('buffer_') or op.startswith('global_'):
        I.kind = 'vmem'
        allmods = mods.split()
        if 'lds' in allmods or 'lds_dword' in op:
            I.lds_dma = True
            for o in ops: I.rd |= parse_reg(o)
            I.rd |= {('s', 'm0')}
        elif 'load' in op:
            I.wr = parse_reg(ops[0])
            for o in ops[1:]: I.rd |= parse_reg(o)
        elif 'store' in op:
            for o in ops: I.rd |= parse_reg(o)
            if op.startswith('buffer_store'):
                d = parse_reg(ops[0])
            else:
                d = parse_reg(ops[1])
            if len(d) >= 3: I.store_data = d
        elif 'atomic' in op:
            for o in ops: I.rd |= parse_reg(o)
            if 'sc0' in allmods: I.wr = parse_reg(ops[0])
        else:
            pass
        return I
    if op.startswith('s_'):
        I.kind = 'salu'
        if op.startswith(('s_cmp', 's_bitcmp', 's_cbranch', 's_branch', 's_waitcnt', 's_barrier', 's_endpgm', 's_sleep', 's_setprio', 's_setreg')):
            for o in ops: I.rd |= parse_reg(o)
        elif op.startswith(('s_load', 's_buffer_load', 's_memtime', 's_memrealtime', 's_getreg', 's_getpc')):
            I.wr = parse_reg(ops[0])
            for o in ops[1:]: I.rd |= parse_reg(o)
            I.kind = 'smem' if not op.startswith(('s_getreg', 's_getpc')) else 'salu'
        elif 'saveexec' in op:
            I.wr = parse_reg(ops[0]) | {('s', 'exec')}
            for o in ops[1:]: I.rd |= parse_reg(o)
        else:
            I.wr = parse_reg(ops[0])
            for o in ops[1:]: I.rd |= parse_reg(o)
        return I
    raise ValueError("unknown instr: " + text)

def need_gap(prev, cur):
    g = 0
    pv = {r for r in prev.wr if r[0] in 'va'}
    ps = {r for r in prev.wr if r[0] == 's'}
    cur_v_rd = {r for r in cur.rd if r[0] in 'va'}
    cur_v_wr = {r for r in cur.wr if r[0] in 'va'}
    cur_s_rd = {r for r in cur.rd if r[0] == 's'}
    is_valu = lambda x: x.kind in ('valu', 'permlane')
    if prev.kind == 'mfma':
        P = prev.passes
        ov = {2: 4, 4: 6, 8: 10}[P]; ab = {2: 5, 4: 8, 8: 12}[P]
        if cur.kind == 'mfma':
            if pv & cur.srcAB: g = max(g, ab)
            if pv & cur.srcC:
                if cur.srcC == prev.wr and cur.passes == P:
                    g = max(g, 2 if P == 2 else 0)
                else:
                    g = max(g, ov)
            elif pv & cur_v_wr: g = max(g, ov)
        else:
            if pv & (cur_v_rd | cur_v_wr): g = max(g, ab)
            if is_valu(cur) and (prev.srcC & cur_v_wr): g = max(g, {2: 1, 4: 3, 8: 7}[P])
            if cur.kind in ('ds', 'vmem') and (prev.srcC & cur_v_wr): g = max(g, {2: 1, 4: 3, 8: 7}[P])
    if is_valu(prev):
        if cur.kind == 'mfma' and (pv & cur.rd): g = max(g, 2)
        if cur.kind == 'mfma' and ('s', 'exec') in ps: g = max(g, 4)
        if cur.kind == 'permlane' and (pv & cur.rd): g = max(g, 2)
        if cur.kind == 'permlane' and ('s', 'exec') in ps: g = max(g, 4)
        if cur.dpp and (pv & cur.rd): g = max(g, 2)
        if cur.dpp and ('s', 'exec') in ps: g = max(g, 5)
        if cur.op.startswith(('v_readfirstlane', 'v_readlane')) and (pv & cur.rd): g = max(g, 1)
        if cur.op.startswith(('v_readfirstlane', 'v_readlane', 'v_writelane')) and ('s', 'exec') in ps: g = max(g, 4)
        if cur.kind == 'vmem' and (ps & cur_s_rd): g = max(g, 5)
        if is_valu(cur) and (ps & cur_s_rd): g = max(g, 2)
        if cur.op.startswith(('v_readlane', 'v_writelane')) and (ps & cur_s_rd): g = max(g, 4)
        if cur.kind in ('salu', 'smem') and (ps & cur_s_rd): g = max(g, 3)
        if prev.op in TRANS and is_valu(cur) and (pv & cur.rd): g = max(g, 1)
        if prev.op in TRANS and cur.kind in ('mfma', 'ds', 'vmem') and (pv & cur.rd): g = max(g, 2)
    if prev.kind == 'salu':
        if ('s', 'm0') in ps and (cur.lds_dma): g = max(g, 1)
    if prev.kind == 'vmem' and prev.store_data:
        if prev.store_data & cur_v_wr: g = max(g, 2)
    return g

class Asm:
    GUID = 0
    def __init__(self):
        self.lines = []
        self.hist = []
        self.vm = []
        self.lg = []
        self.vmregs = []; self.lgregs = []
        self.nop_count = 0
        self.uid = 0
        self.snap = {}
        self.alts = []
        self.label_pos = {}
        self.all = []
    def raw(self, text):
        self.lines.append(text)
    def comment(self, t):
        self.lines.append('; ' + t)
    def label(self, name):
        self.lines.append(name + ':')
        self.label_pos[name] = len(self.all)
        for h in self.snap.pop(name, []):
            self.alts.append([list(h), 0])
    def barrier_hist(self):
        pass
    def newlabel(self, base='L'):
        Asm.GUID += 1
        return f'{base}_{Asm.GUID}'
    def __call__(self, text, tag=None):
        for line in text.strip().split('\n'):
            line = line.strip()
            if not line or line.startswith(';'):
                continue
            self.emit(line, tag)
    def emit(self, text, tag=None):
        I = analyze(text)
        touched = {r for r in (I.rd | I.wr) if r[0] in 'va'}
        for lst, nm in ((self.vmregs, 'vm'), (self.lgregs, 'lg')):
            for regs in lst:
                if regs and (regs & touched):
                    if I.kind in ('vmem', 'ds') and (regs & I.wr) and not (regs & I.rd) and regs == I.wr: continue
                    raise RuntimeError(f"PENDING {nm} hazard: '{text}' touches {sorted(regs & touched)[:4]} still in flight")
        need = 0
        for hist in [self.hist] + [h[0] for h in self.alts]:
            dist = 0
            for prev in reversed(hist):
                g = need_gap(prev, I)
                if g - dist > need: need = g - dist
                dist += prev.nops
                if dist > 24: break
        if I.op.startswith(('s_cbranch', 's_branch')):
            tgt = text.split()[1]
            if tgt in self.label_pos:
                body = self.all[self.label_pos[tgt]: self.label_pos[tgt] + 24]
                for hist in [self.hist] + [h[0] for h in self.alts]:
                    off = 1
                    for b in body:
                        dist = off
                        for prev in reversed(hist):
                            g = need_gap(prev, b)
                            if g - dist > need: need = g - dist
                            dist += prev.nops
                            if dist > 24: break
                        off += b.nops
                        if off > 24: break
        while need > 0:
            n = min(need, 16)
            self._push(analyze(f's_nop {n-1}'))
            self.nop_count += 1
            need -= n
        self._push(I)
        if I.op.startswith(('s_cbranch', 's_branch')):
            tgt = text.split()[1]
            if tgt not in self.label_pos:
                self.snap.setdefault(tgt, []).append(list(self.hist))
        if I.kind == 'vmem':
            self.vm.append(tag); self.vmregs.append(set(I.wr))
        if I.kind == 'ds':
            self.lg.append(tag); self.lgregs.append(set(I.wr))
        if I.op == 's_waitcnt':
            m = re.search(r'vmcnt\((\d+)\)', text)
            if m:
                n = int(m.group(1))
                if len(self.vm) > n:
                    self.vm = self.vm[len(self.vm) - n:] if n else []
                if len(self.vmregs) > n:
                    self.vmregs = self.vmregs[len(self.vmregs) - n:] if n else []
            m = re.search(r'lgkmcnt\((\d+)\)', text)
            if m:
                n = int(m.group(1))
                if len(self.lg) > n:
                    self.lg = self.lg[len(self.lg) - n:] if n else []
                if len(self.lgregs) > n:
                    self.lgregs = self.lgregs[len(self.lgregs) - n:] if n else []
    def _push(self, I):
        self.lines.append('  ' + I.text)
        self.hist.append(I)
        self.all.append(I)
        if len(self.hist) > 40: self.hist = self.hist[-40:]
        for h in self.alts:
            h[0].append(I); h[1] += I.nops
        self.alts = [h for h in self.alts if h[1] < 32]
    def pad(self, n=16):
        while n > 0:
            k = min(n, 16); self.emit(f's_nop {k-1}'); n -= k
    def wait_vm(self, tag):
        idx = -1
        for i, t in enumerate(self.vm):
            if t == tag: idx = i
        if idx < 0: return
        n = len(self.vm) - 1 - idx
        assert n <= 63, "vmcnt overflow"
        self.emit(f's_waitcnt vmcnt({n})')
    def wait_lg(self, tag):
        idx = -1
        for i, t in enumerate(self.lg):
            if t == tag: idx = i
        if idx < 0: return
        n = len(self.lg) - 1 - idx
        n = min(n, 15)
        self.emit(f's_waitcnt lgkmcnt({n})')
    def check_vm(self):
        assert len(self.vm) <= 63, "too many outstanding vmem: %d" % len(self.vm)
    def text(self):
        return '\n'.join(self.lines) + '\n'

def vr(a, n=1):
    return f'v{a}' if n == 1 else f'v[{a}:{a+n-1}]'
def ar(a, n=1):
    return f'a{a}' if n == 1 else f'a[{a}:{a+n-1}]'
def sr(a, n=1):
    return f's{a}' if n == 1 else f's[{a}:{a+n-1}]'
```

```python
import sys, math
sys.path.insert(0, 'dev')
from asmlib import *

NAME = "sequential_preLN__sliding_block__dense_activation_squared_relu__prompt"
KNAME = NAME + "_kernel"
REF = f'cdna_kernels/{NAME}.s.ref'
HDR = open(REF).read().split('; Override')[0]

S, D, H, DH, F = 2048, 448, 16, 28, 1792
WS_O   = 0x000000
WS_H   = 0x200000
WS_ST  = 0x400000
WS_HID = 0x480000
WS_KV  = 0xC00000
WS_FLAG= 0x1000000
WS_DBG = 0x1800000
sX, sWQKV, sWO, sW1, sB1, sW2, sB2, sOUT, sWS, sDBG = 28, 32, 36, 40, 44, 48, 52, 56, 60, 64
sG, sR, sW = 68, 69, 70
sT0, sT1, sT2, sT3 = 71, 72, 73, 74
sP = 96
sEP = 4
sHI = 6
sFL = 8

MF = "v_mfma_f32_32x32x16_bf16"
M16 = "v_mfma_f32_16x16x32_bf16"
MS = "v_mfma_f32_4x4x4_16b_bf16"
f4 = lambda b: f"v[{b}:{b+3}]"
f16 = lambda b: f"v[{b}:{b+15}]"

def f32bits(x):
    import struct
    return struct.unpack('<I', struct.pack('<f', x))[0]

OPT = dict(stamps=False)

def srd(A, d, p, size):
    A(f"s_mov_b32 s{d}, s{p}")
    A(f"s_and_b32 s{d+1}, s{p+1}, 0xffff")
    A(f"s_mov_b32 s{d+2}, {size}")
    A(f"s_mov_b32 s{d+3}, 0x20000")

def stamp(A, idx):
    if not OPT['stamps']: return
    A("s_waitcnt lgkmcnt(0)")
    A("s_memtime s[98:99]")
    A("s_waitcnt lgkmcnt(0)")
    A(f"v_writelane_b32 v255, s98, {idx}")
    A.lg = []
def stamp_dump(A):
    if not OPT['stamps']: return
    A(f"s_lshl_b32 s{sT0}, s2, 2")
    A(f"s_add_u32 s{sT0}, s{sT0}, s{sW}")
    A(f"s_lshl_b32 s{sT0}, s{sT0}, 8")
    A(f"s_add_u32 s{sT0}, s{sT0}, {WS_DBG}")
    A("v_lshlrev_b32 v254, 2, v1")
    A(f"buffer_store_dword v255, v254, s[{sWS}:{sWS+3}], s{sT0} offen")

def do(A, x):
    if callable(x): x()
    elif isinstance(x, tuple): A(x[0], tag=x[1])
    else: A(x)

def interleave(A, main, fill):
    n, m = len(main), len(fill)
    j = 0
    for i, x in enumerate(main):
        do(A, x)
        want = (i + 1) * m // n
        while j < want:
            do(A, fill[j]); j += 1
    while j < m:
        do(A, fill[j]); j += 1

def merge_even(a, b):
    out = []; na, nb = len(a), len(b); tot = na + nb; ai = bi = 0
    for q in range(tot):
        if ai < na and (ai * tot <= q * na or bi >= nb):
            out.append(a[ai]); ai += 1
        else:
            out.append(b[bi]); bi += 1
    return out

def l2_prefetch_list(A, srdreg, total_bytes, vtmp, vdst, sidx4):
    per = (total_bytes // 128 + 127) // 128 * 128
    nl = per // 128
    n = (nl + 63) // 64
    out = []
    for k in range(n):
        def f(k=k):
            A(f"v_add_u32 v{vtmp}, {64*k}, v1")
            A(f"v_min_u32 v{vtmp}, {nl-1}, v{vtmp}")
            A(f"v_lshlrev_b32 v{vtmp}, 7, v{vtmp}")
            A(f"s_mul_i32 s{sT3}, s{sidx4}, {per}")
            A(f"buffer_load_dword v{vdst}, v{vtmp}, s[{srdreg}:{srdreg+3}], s{sT3} offen", tag="pf")
        out.append(f)
    return out

def flag_set(A, phase):
    lab = A.newlabel("Lfs")
    A(f"s_cmp_lg_u32 s{sW}, 0")
    A(f"s_cbranch_scc1 {lab}")
    A(f"v_mov_b32 v2, s{sEP}")
    A(f"v_mov_b32 v3, s{sEP+1}")
    A(f"s_lshl_b32 s{sT0}, s{sR}, 3")
    A(f"s_add_u32 s{sT0}, s{sT0}, s{sFL}")
    A(f"s_add_u32 s{sT0}, s{sT0}, {phase*2048}")
    A(f"v_mov_b32 v4, 0")
    A("s_mov_b64 exec, 1")
    A(f"buffer_store_dwordx2 v[2:3], v4, s[{sWS}:{sWS+3}], s{sT0} offen sc1")
    A("s_mov_b64 exec, -1")
    A.vm.pop(); A.vmregs.pop()
    A.label(lab)

def flag_wait(A, mode, phase, n=16):
    lab = A.newlabel("Lfw"); loop = A.newlabel("Lpoll"); bad = "Lend"
    A(f"s_cmp_lg_u32 s{sW}, 0")
    A(f"s_cbranch_scc1 {lab}")
    if mode == 'group':
        A(f"v_lshlrev_b32 v4, 3, v1")
        A(f"s_add_u32 s{sT0}, s{sFL}, {phase*2048}")
        A(f"s_mov_b64 exec, {(1 << n) - 1}")
    else:
        A(f"v_lshlrev_b32 v4, 7, v1")
        A(f"s_lshl_b32 s{sT0}, s{sR}, 3")
        A(f"s_add_u32 s{sT0}, s{sT0}, s{sFL}")
        A(f"s_add_u32 s{sT0}, s{sT0}, {phase*2048}")
        A(f"v_sub_u32 v4, s{sT0}, v4")
        A(f"v_subrev_u32 v4, 128, v4")
        A(f"s_mov_b32 s{sT0}, 0")
        A(f"s_min_u32 s{sT1}, s{sG}, 2")
        A(f"s_bfm_b64 exec, s{sT1}, 0")
        A(f"s_cbranch_execz {lab}_x")
    A(f"s_mov_b32 s{sT1}, 0")
    A.label(loop)
    A(f"buffer_load_dwordx2 v[2:3], v4, s[{sWS}:{sWS+3}], s{sT0} offen sc1")
    A.vm.pop(); A.vmregs.pop()
    A(f"s_add_u32 s{sT1}, s{sT1}, 1")
    A(f"s_cmp_gt_u32 s{sT1}, 0x40000")
    A(f"s_cbranch_scc1 {bad}")
    A("s_waitcnt vmcnt(0)")
    A(f"v_cmp_ne_u32 vcc, s{sEP}, v2")
    A(f"v_cmp_ne_u32 s[{sP}:{sP+1}], s{sEP+1}, v3")
    A(f"s_or_b64 vcc, vcc, s[{sP}:{sP+1}]")
    A(f"s_cbranch_vccnz {loop}")
    if mode != 'group': A.label(f"{lab}_x")
    A("s_mov_b64 exec, -1")
    A.label(lab)
    A("s_barrier")

def prologue(A):
    A.raw(f".globl {KNAME}\n.p2align 8\n.type {KNAME},@function\n{KNAME}:")
    A(f"s_cmp_ge_u32 s2, 256")
    A(f"s_cbranch_scc1 Lend")
    A("s_load_dwordx16 s[4:19], s[0:1], 0")
    A("s_load_dwordx4 s[20:23], s[0:1], 64")
    A("s_load_dwordx2 s[24:25], s[0:1], 80")
    A(f"s_and_b32 s{sG}, s2, 7")
    A(f"s_lshl_b32 s{sG}, s{sG}, 1")
    A(f"s_lshr_b32 s{sT0}, s2, 7")
    A(f"s_add_u32 s{sG}, s{sG}, s{sT0}")
    A(f"s_lshr_b32 s{sR}, s2, 3")
    A(f"s_and_b32 s{sR}, s{sR}, 15")
    A("v_lshrrev_b32 v2, 6, v0")
    A("v_and_b32 v1, 63, v0")
    A(f"v_readfirstlane_b32 s{sW}, v2")

def prologue2(A):
    A("s_waitcnt lgkmcnt(0)")
    srd(A, sX, 4, S*D*2)
    srd(A, sWQKV, 6, D*3*D*2)
    srd(A, sWS, 24, 0x10000000)
    srd(A, sDBG, 22, 256)

def prologue3(A):
    srd(A, sWO, 8, D*D*2)
    srd(A, sW1, 12, D*F*2)
    srd(A, sB1, 14, F*2)
    srd(A, sW2, 16, F*D*2)
    srd(A, sB2, 18, D*2)
    srd(A, sOUT, 20, S*D*2)
    A(f"s_mov_b32 s{sHI}, 0")
    A(f"s_mov_b32 s{sHI+1}, -1")
    A(f"s_lshl_b32 s{sFL}, s{sG}, 7")
    A(f"s_add_u32 s{sFL}, s{sFL}, {WS_FLAG}")

def epoch_publish(A):
    lab = A.newlabel("Lep")
    A(f"s_or_b32 s{sT0}, s2, s{sW}")
    A(f"s_cmp_lg_u32 s{sT0}, 0")
    A(f"s_cbranch_scc1 {lab}")
    A(f"s_memrealtime s[{sP}:{sP+1}]")
    A("s_waitcnt lgkmcnt(0)")
    A(f"s_or_b32 s{sP+1}, s{sP+1}, 0x80000000")
    A(f"v_mov_b32 v2, s{sP}")
    A(f"v_mov_b32 v3, s{sP+1}")
    A(f"v_mov_b32 v4, 0")
    A("s_mov_b64 exec, 1")
    A(f"buffer_store_dwordx2 v[2:3], v4, s[{sDBG}:{sDBG+3}], 0 offen sc1")
    A("s_mov_b64 exec, -1")
    A.vm.pop(); A.vmregs.pop()
    A.label(lab)

def epoch_fetch(A):
    lab = A.newlabel("Lef"); loop = A.newlabel("Lefp")
    A(f"s_cmp_lg_u32 s{sW}, 0")
    A(f"s_cbranch_scc1 {lab}")
    A(f"v_mov_b32 v4, 0")
    A(f"s_mov_b32 s{sT1}, 0")
    A.label(loop)
    A(f"buffer_load_dwordx2 v[2:3], v4, s[{sDBG}:{sDBG+3}], 0 offen sc1")
    A.vm.pop(); A.vmregs.pop()
    A(f"s_add_u32 s{sT1}, s{sT1}, 1")
    A(f"s_cmp_gt_u32 s{sT1}, 0x40000")
    A(f"s_cbranch_scc1 Lend")
    A("s_waitcnt vmcnt(0)")
    A(f"v_readfirstlane_b32 s{sEP+1}, v3")
    A(f"v_readfirstlane_b32 s{sEP}, v2")
    A(f"s_cmp_eq_u32 s{sEP+1}, 0")
    A(f"s_cbranch_scc1 {loop}")
    A.label(lab)

W_BASE = 0
XR_BASE = 86016
CS_BASE = 160256
RS_BASE = CS_BASE + 3072
KV_BASE = 111104
WO_BASE = 0
W1_BASE = 58368
W1CS_BASE = W1_BASE + 100352
LDS_TOTAL = 163840
W2ST_BASE = 0
W1A_G = 7

def lane_tr_common(A, vG4, vRR, vC):
    A(f"v_lshrrev_b32 v{vG4}, 4, v1")
    A(f"v_bfe_u32 v{vRR}, v1, 2, 2")
    A(f"v_and_b32 v{vC}, 3, v1")

def dma128_voff(A, dst, t0, t1, t2, sCOL):
    A(f"v_lshrrev_b32 v{t0}, 3, v1")
    A(f"v_and_b32 v{t1}, 7, v1")
    A(f"v_bfe_u32 v{t2}, v{t0}, 1, 2")
    A(f"v_lshlrev_b32 v{t2}, 1, v{t2}")
    A(f"v_xor_b32 v{t1}, v{t1}, v{t2}")
    A(f"v_lshlrev_b32 v{t1}, 4, v{t1}")
    A(f"v_mul_u32_u24 v{t0}, 896, v{t0}")
    A(f"v_add3_u32 v{dst}, v{t0}, v{t1}, s{sCOL}")

def kernel(A):
    prologue(A)
    aq, ak, av = 16, 32, 48
    XB = [64, 80]
    SQ = [96, 100]; CS = [104, 108, 112]; ONES = 116
    vOW = [118, 119, 120]; vOX = [121, 122]
    vXR = [123, 124, 125, 126]; vWR = [127, 128]
    T = list(range(130, 170))
    QF = 240
    sRING, sWOFF, sWM0 = 75, 76, 77
    sI = [78, 79, 80, 81]
    sM1, sM2, sM3 = 82, 84, 86
    sL28 = 88; sOH = 90
    sCOL, sCS, sTH, sKV, sX4 = 91, 92, 93, 94, 95
    for i in range(4): A(f"s_mov_b32 s{sI[i]}, {i*7168}")
    A(f"s_mul_i32 s{sT0}, s{sR}, 56")
    A(f"s_and_b32 s{sOH}, s{sT0}, 15")
    A(f"s_andn2_b32 s{sT0}, s{sT0}, 15")
    A(f"s_mul_i32 s{sWOFF}, s{sW}, {16*2688}")
    A(f"s_add_u32 s{sWOFF}, s{sWOFF}, s{sT0}")
    A(f"s_mul_i32 s{sWM0}, s{sW}, 3072")
    A(f"s_lshl_b32 s{sRING}, s{sW}, 14")
    A(f"s_add_u32 s{sRING}, s{sRING}, {XR_BASE}")
    for p in range(3):
        A(f"v_add_u32 v{T[0]}, {64*p}, v1")
        A(f"v_mul_u32_u24 v{T[1]}, 43691, v{T[0]}")
        A(f"v_lshrrev_b32 v{T[1]}, 19, v{T[1]}")
        A(f"v_mul_u32_u24 v{T[2]}, 12, v{T[1]}")
        A(f"v_sub_u32 v{T[2]}, v{T[0]}, v{T[2]}")
        A(f"v_lshrrev_b32 v{T[3]}, 2, v{T[2]}")
        A(f"v_and_b32 v{T[2]}, 3, v{T[2]}")
        A(f"v_mul_u32_u24 v{T[1]}, 2688, v{T[1]}")
        A(f"v_mul_u32_u24 v{T[3]}, 896, v{T[3]}")
        A(f"v_lshlrev_b32 v{T[2]}, 4, v{T[2]}")
        A(f"v_add3_u32 v{vOW[p]}, v{T[1]}, v{T[3]}, v{T[2]}")
    A(f"s_lshl_b32 s{sT0}, s{sG}, 7")
    A(f"s_lshl_b32 s{sT1}, s{sW}, 5")
    A(f"s_add_u32 s{sT0}, s{sT0}, s{sT1}")
    A(f"s_mul_i32 s{sT0}, s{sT0}, 896")
    A(f"v_lshrrev_b32 v{T[0]}, 3, v1")
    A(f"v_mul_u32_u24 v{T[0]}, 896, v{T[0]}")
    A(f"v_add_u32 v{T[0]}, s{sT0}, v{T[0]}")
    A(f"v_and_b32 v{T[1]}, 7, v1")
    A(f"v_lshrrev_b32 v{T[2]}, 4, v1")
    A(f"v_xor_b32 v{T[1]}, v{T[1]}, v{T[2]}")
    A(f"v_xor_b32 v{T[2]}, 4, v{T[1]}")
    A(f"v_lshl_add_u32 v{vOX[0]}, v{T[1]}, 4, v{T[0]}")
    A(f"v_lshl_add_u32 v{vOX[1]}, v{T[2]}, 4, v{T[0]}")
    prologue2(A)
    stamp(A, 0)
    def dma_w_list(kb):
        out = []
        for p in range(3):
            def f(p=p):
                A(f"s_add_u32 s{sT0}, s{sWOFF}, {kb*4*16*2688}")
                A(f"s_add_u32 m0, s{sWM0}, {W_BASE + (12*kb+p)*1024}")
                A(f"buffer_load_dwordx4 v{vOW[p]}, s[{sWQKV}:{sWQKV+3}], s{sT0} offen lds", tag=f"W{kb}")
            out.append(f)
        return out
    def dma_x_list(u):
        slot = u & 3
        out = []
        for i in range(4):
            def f(i=i):
                A(f"s_add_u32 m0, s{sRING}, {slot*4096 + i*1024 - u*128}")
                A(f"buffer_load_dwordx4 v{vOX[i&1]}, s[{sX}:{sX+3}], s{sI[i]} offen offset:{u*128} lds", tag=f"X{u}")
            out.append(f)
        return out
    for kb in range(2):
        for f in dma_w_list(kb): f()
        for f in dma_x_list(kb): f()
    epoch_publish(A)
    prologue3(A)
    A(f"s_lshr_b32 s{sX4}, s2, 3")
    A(f"s_lshl_b32 s{sX4}, s{sX4}, 2")
    A(f"s_add_u32 s{sX4}, s{sX4}, s{sW}")
    A(f"s_min_u32 s{sT0}, s{sR}, 13")
    A(f"s_and_b32 s{sTH}, s{sT0}, 1")
    A(f"s_lshr_b32 s{sCS}, s{sT0}, 1")
    A(f"s_lshl_b32 s{sCOL}, s{sCS}, 7")
    A(f"v_and_b32 v{T[0]}, 31, v1")
    A(f"v_lshrrev_b32 v{T[1]}, 5, v1")
    A(f"v_bfe_u32 v{T[2]}, v{T[0]}, 1, 3")
    A(f"v_xor_b32 v{T[2]}, v{T[2]}, v{T[1]}")
    A(f"v_lshlrev_b32 v{T[3]}, 7, v{T[0]}")
    A(f"v_add_u32 v{T[3]}, s{sRING}, v{T[3]}")
    for s in range(4):
        A(f"v_xor_b32 v{T[4]}, {2*s}, v{T[2]}")
        A(f"v_lshl_add_u32 v{vXR[s]}, v{T[4]}, 4, v{T[3]}")
    A(f"v_bfe_u32 v{T[2]}, v1, 2, 2")
    A(f"v_lshl_add_u32 v{T[2]}, v{T[1]}, 3, v{T[2]}")
    A(f"v_mul_u32_u24 v{T[2]}, 192, v{T[2]}")
    A(f"v_bfe_u32 v{T[3]}, v1, 4, 1")
    A(f"v_lshl_add_u32 v{T[2]}, v{T[3]}, 5, v{T[2]}")
    A(f"v_and_b32 v{T[3]}, 3, v1")
    A(f"v_lshl_add_u32 v{T[2]}, v{T[3]}, 3, v{T[2]}")
    A(f"v_add_u32 v{vWR[0]}, s{sOH}, v{T[2]}")
    A(f"v_add_u32 v{vWR[1]}, {320*192}, v{vWR[0]}")
    A(f"v_cmp_eq_u32 s[{sM1}:{sM1+1}], 1, v{T[3]}")
    A(f"v_cmp_eq_u32 s[{sM2}:{sM2+1}], 2, v{T[3]}")
    A(f"v_cmp_eq_u32 s[{sM3}:{sM3+1}], 3, v{T[3]}")
    A(f"s_mov_b32 s{sL28}, 0x10000000")
    A(f"s_mov_b32 s{sL28+1}, 0x10000000")
    for r in range(96, 116): A(f"v_mov_b32 v{r}, 0")
    A(f"v_mov_b32 v{ONES}, 0x3f803f80")
    A(f"v_mov_b32 v{ONES+1}, 0x3f803f80")
    for f in dma_w_list(2): f()
    for f in dma_x_list(2): f()
    def wfrag(kb, seg, s): return (kb & 1) * 48 + (seg*4 + s) * 4
    def w_reads(kb):
        out = []
        for seg in (1, 0, 2):
            for s in range(4):
                for u2 in range(2):
                    base = 0 if kb < 5 else 1
                    off = (64*kb + 16*s + 4*u2 - (320 if base else 0)) * 192 + seg*64
                    out.append((f"ds_read_b64_tr_b16 a[{wfrag(kb,seg,s)+2*u2}:{wfrag(kb,seg,s)+2*u2+1}], v{vWR[base]} offset:{off}", f"wf{kb}_{seg}"))
        return out
    def x_reads(u):
        slot = u & 3
        return [(f"ds_read_b128 v[{XB[u&1]+4*s}:{XB[u&1]+4*s+3}], v{vXR[s]} offset:{slot*4096}", f"xf{u}") for s in range(4)]
    def patch(kb):
        def f():
            A.wait_lg(f"wf{kb}_1")
            A(f"s_mov_b64 exec, s[{sL28}:{sL28+1}]")
            for s in range(4):
                for j in range(4):
                    A(f"v_accvgpr_write_b32 a{wfrag(kb,1,s)+j}, v{ONES}")
            A("s_mov_b64 exec, -1")
        return [f]
    stamp(A, 1)
    A.wait_vm("W0")
    A("s_barrier")
    for x in w_reads(0): do(A, x)
    A.wait_vm("X0")
    for x in x_reads(0): do(A, x)
    for x in patch(0): do(A, x)
    PFD = 239; PFT = 235
    pf1 = l2_prefetch_list(A, sWO, D*D*2, PFT, PFD, sX4) + l2_prefetch_list(A, sW1, D*F*2, PFT, PFD, sX4)
    for kb in range(7):
        xb = XB[kb & 1]
        stamp(A, 2 + kb)
        A("s_waitcnt lgkmcnt(0)")
        main = []
        for s in range(4):
            xf = f4(xb + 4*s)
            wq, wk, wv = [f"a[{wfrag(kb,seg,s)}:{wfrag(kb,seg,s)+3}]" for seg in range(3)]
            first = (kb == 0 and s == 0)
            main.append(f"{MF} {f16(ak)}, {wk}, {xf}, {'0' if first else f16(ak)}")
            main.append(f"{MF} {f16(aq)}, {wq}, {xf}, {'0' if first else f16(aq)}")
            main.append(f"{MF} {f16(av)}, {xf}, {wv}, {'0' if first else f16(av)}")
        fill = []
        if kb + 1 <= 6:
            fill.append(lambda kb=kb: (A.wait_vm(f"W{kb+1}"), A("s_barrier")))
            fill += w_reads(kb + 1)[:8]
            fill.append(lambda kb=kb: A.wait_vm(f"X{kb+1}"))
            fill += x_reads(kb + 1)
            fill += w_reads(kb + 1)[8:]
            fill += patch(kb + 1)
        dm = []
        if kb + 3 <= 6: dm = dma_w_list(kb + 3) + dma_x_list(kb + 3)
        if kb == 4: dm = pf1
        fill = merge_even(dm, fill)
        interleave(A, main, fill)
        for s in range(4):
            for hf in range(2):
                A(f"{MS} {f4(SQ[hf])}, v[{xb+4*s+2*hf}:{xb+4*s+2*hf+1}], v[{xb+4*s+2*hf}:{xb+4*s+2*hf+1}], {f4(SQ[hf])}")
        for s in range(4):
            lab = A.newlabel("Lcs")
            A(f"s_cmp_lg_u32 s{sW}, {s}")
            A(f"s_cbranch_scc1 {lab}")
            for half in range(2):
                for seg in range(3):
                    w0 = wfrag(kb, seg, s) + 2*half
                    A(f"{MS} {f4(CS[seg])}, a[{w0}:{w0+1}], v[{ONES}:{ONES+1}], {f4(CS[seg])}")
            A.label(lab)
    stamp(A, 9)
    def sel4(dst, base):
        A(f"v_cndmask_b32 v{dst}, v{base}, v{base+1}, s[{sM1}:{sM1+1}]")
        A(f"v_cndmask_b32 v{dst}, v{dst}, v{base+2}, s[{sM2}:{sM2+1}]")
        A(f"v_cndmask_b32 v{dst}, v{dst}, v{base+3}, s[{sM3}:{sM3+1}]")
    A(f"v_and_b32 v{T[0]}, 31, v1")
    A(f"v_lshrrev_b32 v{T[1]}, 5, v1")
    A(f"v_lshlrev_b32 v{T[2]}, 5, v{T[0]}")
    A(f"v_add_u32 v{T[2]}, {CS_BASE}, v{T[2]}")
    A(f"s_lshl_b32 s{sT0}, s{sW}, 3")
    A(f"v_lshl_add_u32 v{T[3]}, v{T[1]}, 2, v{T[2]}")
    A(f"v_add_u32 v{T[3]}, s{sT0}, v{T[3]}")
    for seg in range(3):
        sel4(T[4+seg], CS[seg])
        A(f"ds_write_b32 v{T[3]}, v{T[4+seg]} offset:{seg*1024}")
    MEAN, RSTD, XC = T[8], T[9], T[10]
    for j in range(4): A(f"v_add_f32 v{SQ[0]+j}, v{SQ[0]+j}, v{SQ[1]+j}")
    sel4(T[4], SQ[0])
    A(f"v_mov_b32 v{T[5]}, v{T[4]}")
    A(f"v_mov_b32 v{T[6]}, v{ak+12}")
    A(f"v_mov_b32 v{T[7]}, v{ak+12}")
    A(f"v_permlane32_swap_b32 v{T[4]}, v{T[5]}")
    A(f"v_permlane32_swap_b32 v{T[6]}, v{T[7]}")
    A(f"v_add_f32 v{T[4]}, v{T[4]}, v{T[5]}")
    A(f"v_mul_f32 v{MEAN}, {f32bits(1.0/448):#x}, v{T[7]}")
    A(f"v_mul_f32 v{T[4]}, {f32bits(1.0/448):#x}, v{T[4]}")
    A(f"v_fma_f32 v{T[4]}, -v{MEAN}, v{MEAN}, v{T[4]}")
    A(f"v_max_f32 v{T[4]}, 0, v{T[4]}")
    A(f"v_add_f32 v{T[4]}, {f32bits(1e-5):#x}, v{T[4]}")
    A(f"v_rsq_f32 v{RSTD}, v{T[4]}")
    A(f"s_lshl_b32 s{sT0}, s{sW}, 7")
    A(f"s_add_u32 s{sT0}, s{sT0}, {RS_BASE}")
    A(f"v_lshlrev_b32 v{T[6]}, 2, v{T[0]}")
    A(f"v_add_u32 v{T[6]}, s{sT0}, v{T[6]}")
    A(f"ds_write_b32 v{T[6]}, v{RSTD}")
    A(f"v_sub_f32 v{T[4]}, 0, v{MEAN}")
    A(f"v_cvt_pk_bf16_f32 v{T[5]}, v{T[4]}, v{T[4]}")
    A(f"v_lshlrev_b32 v{T[5]}, 16, v{T[5]}")
    A(f"v_sub_f32 v{T[5]}, v{T[4]}, v{T[5]}")
    A(f"v_cvt_pk_bf16_f32 v{XC}, v{T[4]}, v{T[5]}")
    A(f"v_cndmask_b32 v{XC}, v{XC}, 0, s[{sHI}:{sHI+1}]")
    A(f"v_lshlrev_b32 v{T[5]}, 4, v{T[1]}")
    A(f"v_add_u32 v{T[5]}, s{sT0}, v{T[5]}")
    XCF = 108
    A("s_waitcnt lgkmcnt(0)")
    A("s_barrier")
    CB = 64
    for seg in (1, 2, 0):
        A(f"ds_read_b128 {f4(CB+8*seg)}, v{T[2]} offset:{seg*1024}")
        A(f"ds_read_b128 {f4(CB+8*seg+4)}, v{T[2]} offset:{seg*1024+16}")
    RB = 172
    for q in range(4):
        A(f"ds_read_b128 {f4(RB+4*q)}, v{T[5]} offset:{q*32}")
    vDW = 236; KVW = 237; vL16 = 238
    dma128_voff(A, vDW, T[11], T[12], T[13], sCOL)
    A(f"s_lshl_b32 s{sT0}, s{sW}, 12")
    A(f"s_add_u32 s{sT0}, s{sT0}, {KV_BASE}")
    A(f"v_lshlrev_b32 v{vL16}, 4, v1")
    A(f"v_add_u32 v{KVW}, s{sT0}, v{vL16}")
    A(f"s_lshl_b32 s{sKV}, s{sG}, 4")
    A(f"s_add_u32 s{sKV}, s{sKV}, s{sR}")
    A(f"s_lshl_b32 s{sKV}, s{sKV}, 14")
    A(f"s_add_u32 s{sKV}, s{sKV}, {WS_KV}")
    A(f"s_lshl_b32 s{sT3}, s{sW}, 12")
    A(f"s_add_u32 s{sT3}, s{sT3}, s{sKV}")
    A(f"v_mov_b32 v{XCF}, v{XC}")
    A(f"v_mov_b32 v{XCF+1}, v{XC}")
    A(f"v_mov_b32 v{XCF+2}, 0")
    A(f"v_mov_b32 v{XCF+3}, 0")
    WC = [96, 100, 104]
    A("s_waitcnt lgkmcnt(0)")
    accs = [aq, ak, av]
    for seg in (1, 2, 0):
        b = CB + 8*seg
        for k in (1, 2, 4):
            for j in range(0, 8, 2*k):
                A(f"v_add_f32 v{b+j}, v{b+j}, v{b+j+k}")
        A(f"v_cvt_pk_bf16_f32 v{WC[seg]}, v{b}, v{b}")
        A(f"v_lshlrev_b32 v{b+1}, 16, v{WC[seg]}")
        A(f"v_sub_f32 v{b+1}, v{b}, v{b+1}")
        A(f"v_cvt_pk_bf16_f32 v{WC[seg]+1}, v{b+1}, v{b+1}")
        A(f"v_mov_b32 v{WC[seg]+2}, 0")
        A(f"v_mov_b32 v{WC[seg]+3}, 0")
        if seg == 2: A(f"{MF} {f16(av)}, {f4(XCF)}, {f4(WC[2])}, {f16(av)}")
        else: A(f"{MF} {f16(accs[seg])}, {f4(WC[seg])}, {f4(XCF)}, {f16(accs[seg])}")
    PK = 64; PV = 72
    A(f"v_cmp_eq_u32 s[{sM1}:{sM1+1}], 28, v{T[0]}")
    A(f"v_mov_b32 v{T[6]}, 0x3f803f80")
    for r in range(16): A(f"v_mul_f32 v{ak+r}, v{ak+r}, v{RSTD}")
    for j in range(8): A(f"v_cvt_pk_bf16_f32 v{PK+j}, v{ak+2*j}, v{ak+2*j+1}")
    for j in (6, 7): A(f"v_cndmask_b32 v{PK+j}, v{PK+j}, 0, s[{sHI}:{sHI+1}]")
    A(f"buffer_store_dwordx4 {f4(PK)}, v{vL16}, s[{sWS}:{sWS+3}], s{sT3} offen sc1", tag="kvst")
    A(f"buffer_store_dwordx4 {f4(PK+4)}, v{vL16}, s[{sWS}:{sWS+3}], s{sT3} offen offset:1024 sc1", tag="kvst")
    for r in range(16): A(f"v_mul_f32 v{av+r}, v{av+r}, v{RB+r}")
    for j in range(8): A(f"v_cvt_pk_bf16_f32 v{PV+j}, v{av+2*j}, v{av+2*j+1}")
    for j in range(8): A(f"v_cndmask_b32 v{PV+j}, v{PV+j}, v{T[6]}, s[{sM1}:{sM1+1}]")
    A(f"buffer_store_dwordx4 {f4(PV)}, v{vL16}, s[{sWS}:{sWS+3}], s{sT3} offen offset:2048 sc1", tag="kvst")
    A(f"buffer_store_dwordx4 {f4(PV+4)}, v{vL16}, s[{sWS}:{sWS+3}], s{sT3} offen offset:3072 sc1", tag="kvst")
    A(f"ds_write_b128 v{KVW}, {f4(PK)} offset:{8*4096}")
    A(f"ds_write_b128 v{KVW}, {f4(PK+4)} offset:{8*4096+1024}")
    A(f"ds_write_b128 v{KVW}, {f4(PV)} offset:{8*4096+2048}")
    A(f"ds_write_b128 v{KVW}, {f4(PV+4)} offset:{8*4096+3072}")
    def wo_dma(k):
        if k < 14:
            A(f"s_mul_i32 s{sT1}, s{sW}, 7168")
            A(f"s_lshl_b32 s{sT2}, s{sW}, 10")
            A(f"s_add_u32 s{sT0}, s{sT1}, {k*4*7168}")
            A(f"s_add_u32 m0, s{sT2}, {WO_BASE + k*4096}")
        else:
            A(f"s_mov_b32 s{sT0}, {56*7168}")
            A(f"s_mov_b32 m0, {WO_BASE + 56*1024}")
        A(f"buffer_load_dwordx4 v{vDW}, s[{sWO}:{sWO+3}], s{sT0} offen lds", tag="wo")
    for k in range(6): wo_dma(k)
    c = (DH ** -0.5) * math.log2(math.e)
    A(f"v_mul_f32 v{T[4]}, {f32bits(c):#x}, v{RSTD}")
    for r in range(16): A(f"v_mul_f32 v{aq+r}, v{aq+r}, v{T[4]}")
    for j in range(8): A(f"v_cvt_pk_bf16_f32 v{QF+j}, v{aq+2*j}, v{aq+2*j+1}")
    for j in (6, 7): A(f"v_cndmask_b32 v{QF+j}, v{QF+j}, 0, s[{sHI}:{sHI+1}]")
    vO = list(range(224, 231))
    for p in range(7):
        A(f"v_add_u32 v{T[3]}, {64*p}, v1")
        A(f"v_mul_u32_u24 v{T[4]}, 18725, v{T[3]}")
        A(f"v_lshrrev_b32 v{T[4]}, 18, v{T[4]}")
        A(f"v_mul_u32_u24 v{T[5]}, 14, v{T[4]}")
        A(f"v_sub_u32 v{T[5]}, v{T[3]}, v{T[5]}")
        A(f"v_mul_u32_u24 v{T[4]}, 3584, v{T[4]}")
        A(f"v_lshl_add_u32 v{vO[p]}, v{T[5]}, 4, v{T[4]}")
    stamp(A, 10)
    A.wait_vm("kvst")
    A("s_waitcnt lgkmcnt(0)")
    A("s_barrier")
    epoch_fetch(A)
    flag_set(A, 0)
    for k in range(6, 15): wo_dma(k)
    def w1_group(Gexpr_base, sub_w, cond_w_ge1):
        lab = None
        if cond_w_ge1:
            lab = A.newlabel("Lw1")
            A(f"s_cmp_eq_u32 s{sW}, 0"); A(f"s_cbranch_scc1 {lab}")
        A(f"s_sub_u32 s{sT3}, {Gexpr_base}, s{sW}")
        A(f"s_mul_i32 s{sT0}, s{sT3}, {32*3584}")
        A(f"s_mul_i32 s{sT1}, s{sR}, 224")
        A(f"s_add_u32 s{sT0}, s{sT0}, s{sT1}")
        A(f"s_mul_i32 s{sT2}, s{sT3}, 7168")
        for p in range(7):
            A(f"s_add_u32 m0, s{sT2}, {W1_BASE + p*1024}")
            A(f"buffer_load_dwordx4 v{vO[p]}, s[{sW1}:{sW1+3}], s{sT0} offen lds", tag="w1")
        if lab: A.label(lab)
    w1_group(3, True, False)
    w1_group(7, True, True)
    A.vm = []
    flag_wait(A, 'kv', 0)
    stamp(A, 11)
    A(f"s_lshl_b32 s{sT0}, s{sW}, 12")
    A(f"s_add_u32 s{sT0}, s{sT0}, s{sKV}")
    HB = 16
    for jj, back in ((0, 2), (1, 1)):
        A(f"s_sub_u32 s{sT1}, s{sT0}, {back*16*16384}")
        A(f"s_cmp_lt_u32 s{sG}, {back}")
        A(f"s_cselect_b32 s{sT1}, 0x7ffff000, s{sT1}")
        for i in range(4):
            A(f"buffer_load_dwordx4 {f4(HB+16*jj+4*i)}, v{vL16}, s[{sWS}:{sWS+3}], s{sT1} offen offset:{i*1024} sc1", tag=f"halo{jj}")
    SB = 16; KF = [160, 168]; VF = [176, 184]; OA = 192
    TT = list(range(208, 224))
    KVR = KVW
    NEG = TT[0]; QQ = TT[1]; MX = TT[2]; MX2 = TT[3]
    A(f"v_mov_b32 v{NEG}, {f32bits(-1e30):#x}")
    A(f"v_and_b32 v{QQ}, 31, v1")
    A(f"v_lshrrev_b32 v{MX}, 5, v1")
    A(f"v_lshlrev_b32 v{MX}, 2, v{MX}")
    A(f"v_sub_u32 v{QQ}, v{QQ}, v{MX}")
    for jj in range(2):
        A.wait_vm(f"halo{jj}")
        for i in range(4):
            A(f"ds_write_b128 v{KVW}, {f4(HB+16*jj+4*i)} offset:{jj*4*4096 + i*1024}")
    for f in l2_prefetch_list(A, sW2, F*D*2, PFT, PFD, sX4): f()
    A("s_waitcnt lgkmcnt(0)")
    A("s_barrier")
    stamp(A, 12)
    def kread(i): return [(f"ds_read_b128 {f4(KF[i&1])}, v{KVR} offset:{i*4096}", f"k{i}"),
                          (f"ds_read_b128 {f4(KF[i&1]+4)}, v{KVR} offset:{i*4096+1024}", f"k{i}")]
    for x in kread(0): do(A, x)
    order = [0, 8, 1, 2, 3, 4, 5, 6, 7]
    def kread2(n, i): return [(f"ds_read_b128 {f4(KF[n&1])}, v{KVR} offset:{i*4096}", f"k{i}"),
                              (f"ds_read_b128 {f4(KF[n&1]+4)}, v{KVR} offset:{i*4096+1024}", f"k{i}")]
    for i in range(9):
        if i + 1 < 9:
            for x in kread(i+1): do(A, x)
        A.wait_lg(f"k{i}")
        sb = SB + 16*i
        A(f"{MF} {f16(sb)}, {f4(KF[i&1])}, {f4(QF)}, 0")
        A(f"{MF} {f16(sb)}, {f4(KF[i&1]+4)}, {f4(QF+4)}, {f16(sb)}")
    for r in range(16):
        rc = (r & 3) + 8 * (r >> 2)
        sp = 10 + 2 * (r & 3)
        A(f"v_cmp_ge_i32 s[{sp}:{sp+1}], v{QQ}, {rc}")
        if (r & 3) == 3:
            for rr in range(r - 3, r + 1):
                sp2 = 10 + 2 * (rr & 3)
                A(f"v_cndmask_b32 v{SB+16*8+rr}, v{NEG}, v{SB+16*8+rr}, s[{sp2}:{sp2+1}]")
                A(f"v_cndmask_b32 v{SB+rr}, v{SB+rr}, v{NEG}, s[{sp2}:{sp2+1}]")
    A(f"s_lshl_b32 s{sT0}, s{sG}, 2")
    A(f"s_add_u32 s{sT0}, s{sT0}, s{sW}")
    skip_all = A.newlabel("Lval")
    A(f"s_cmp_ge_u32 s{sT0}, 8")
    A(f"s_cbranch_scc1 {skip_all}")
    for i in range(8):
        lab = A.newlabel("Linv")
        A(f"s_cmp_ge_u32 s{sT0}, {8 - i}")
        A(f"s_cbranch_scc1 {lab}")
        for r in range(16): A(f"v_mov_b32 v{SB+16*i+r}, v{NEG}")
        A.label(lab)
    A.label(skip_all)
    A(f"v_max_f32 v{MX}, v{SB}, v{SB+1}")
    A(f"v_max_f32 v{MX2}, v{SB+2}, v{SB+3}")
    for k in range(4, 144, 4):
        A(f"v_max3_f32 v{MX}, v{MX}, v{SB+k}, v{SB+k+1}")
        A(f"v_max3_f32 v{MX2}, v{MX2}, v{SB+k+2}, v{SB+k+3}")
    A(f"v_max_f32 v{MX}, v{MX}, v{MX2}")
    A(f"v_mov_b32 v{MX2}, v{MX}")
    A(f"v_permlane32_swap_b32 v{MX}, v{MX2}")
    A(f"v_max_f32 v{MX}, v{MX}, v{MX2}")
    stamp(A, 13)
    def vread(i): return [(f"ds_read_b128 {f4(VF[i&1])}, v{KVR} offset:{i*4096+2048}", f"v{i}"),
                          (f"ds_read_b128 {f4(VF[i&1]+4)}, v{KVR} offset:{i*4096+3072}", f"v{i}")]
    for x in vread(0): do(A, x)
    for i in range(9):
        sb = SB + 16*i
        if i + 1 < 9:
            for x in vread(i+1): do(A, x)
        for r in range(16):
            A(f"v_sub_f32 v{sb+r}, v{sb+r}, v{MX}")
            A(f"v_exp_f32 v{sb+r}, v{sb+r}")
        for j in range(8): A(f"v_cvt_pk_bf16_f32 v{sb+j}, v{sb+2*j}, v{sb+2*j+1}")
        A.wait_lg(f"v{i}")
        cc = "0" if i == 0 else f16(OA)
        A(f"{MF} {f16(OA)}, {f4(VF[i&1])}, {f4(sb)}, {cc}")
        A(f"{MF} {f16(OA)}, {f4(VF[i&1]+4)}, {f4(sb+4)}, {f16(OA)}")
    L1, L2 = TT[4], TT[5]
    A(f"s_lshl_b32 s{sT0}, s{sG}, 3")
    A(f"s_lshl_b32 s{sT1}, s{sW}, 1")
    A(f"s_add_u32 s{sT0}, s{sT0}, s{sT1}")
    A(f"s_lshl_b32 s{sT0}, s{sT0}, 4")
    A(f"s_add_u32 s{sT0}, s{sT0}, s{sR}")
    A(f"s_lshl_b32 s{sT0}, s{sT0}, 10")
    A(f"s_add_u32 s{sT3}, s{sT0}, {WS_O}")
    A(f"v_bfe_u32 v{TT[6]}, v1, 4, 1")
    A(f"v_lshlrev_b32 v{TT[6]}, 14, v{TT[6]}")
    A(f"v_and_b32 v{L2}, 15, v1")
    A(f"v_lshl_add_u32 v{TT[6]}, v{L2}, 4, v{TT[6]}")
    A(f"v_lshrrev_b32 v{L2}, 5, v1")
    A(f"v_lshl_add_u32 v{TT[6]}, v{L2}, 8, v{TT[6]}")
    A(f"v_mov_b32 v{L1}, v{OA+12}")
    A(f"v_mov_b32 v{L2}, v{OA+12}")
    A(f"v_permlane32_swap_b32 v{L1}, v{L2}")
    A(f"v_rcp_f32 v{L2}, v{L2}")
    for r in range(16): A(f"v_mul_f32 v{OA+r}, v{OA+r}, v{L2}")
    for j in range(8): A(f"v_cvt_pk_bf16_f32 v{OA+j}, v{OA+2*j}, v{OA+2*j+1}")
    for j in (6, 7): A(f"v_cndmask_b32 v{OA+j}, v{OA+j}, 0, s[{sHI}:{sHI+1}]")
    A(f"buffer_store_dwordx4 {f4(OA)}, v{TT[6]}, s[{sWS}:{sWS+3}], s{sT3} offen sc1", tag="ost")
    A(f"buffer_store_dwordx4 {f4(OA+4)}, v{TT[6]}, s[{sWS}:{sWS+3}], s{sT3} offen offset:512 sc1", tag="ost")
    stamp(A, 14)
    A("s_barrier")
    w1_group(10, True, False)
    A.wait_vm("ost")
    A("s_barrier")
    flag_set(A, 1)
    w1_group(14, True, True)
    A.vm = []
    T = list(range(2, 16))
    sTT = 76
    A(f"s_lshl_b32 s{sTT}, s{sG}, 3")
    A(f"s_lshl_b32 s{sT0}, s{sTH}, 2")
    A(f"s_add_u32 s{sTT}, s{sTT}, s{sT0}")
    A(f"s_add_u32 s{sTT}, s{sTT}, s{sW}")
    vA = [24, 25, 26, 27]; vL = 28
    OF = 32; ACC2 = 96; WF = 112; XR = 144
    G4, RR, C = 29, 30, 31
    lane_tr_common(A, G4, RR, C)
    A(f"v_lshlrev_b32 v{vL}, 4, v1")
    A(f"v_and_b32 v{T[6]}, 15, v1")
    A(f"s_lshl_b32 s{sT0}, s{sTT}, 4")
    A(f"v_add_u32 v{T[6]}, s{sT0}, v{T[6]}")
    A(f"v_mul_u32_u24 v{T[7]}, 896, v{T[6]}")
    A(f"v_lshl_add_u32 v{T[7]}, v{G4}, 3, v{T[7]}")
    for i in range(4):
        A(f"buffer_load_dwordx2 v[{XR+2*i}:{XR+2*i+1}], v{T[7]}, s[{sX}:{sX+3}], s{sCOL} offen offset:{32*i}", tag="xr")
    A(f"v_lshrrev_b32 v{T[8]}, 1, v{G4}")
    A(f"v_lshlrev_b32 v{T[8]}, 4, v{T[8]}")
    A(f"v_and_b32 v{T[9]}, 1, v{G4}")
    A(f"v_lshl_add_u32 v{T[8]}, v{T[9]}, 2, v{T[8]}")
    A(f"v_add_u32 v{T[8]}, v{T[8]}, v{RR}")
    A(f"v_lshlrev_b32 v{T[8]}, 7, v{T[8]}")
    A(f"v_lshl_add_u32 v{T[8]}, v{C}, 3, v{T[8]}")
    A(f"v_lshrrev_b32 v{T[10]}, 1, v{RR}")
    A(f"v_lshl_add_u32 v{T[9]}, v{T[9]}, 1, v{T[10]}")
    for i in range(4):
        A(f"v_xor_b32 v{T[10]}, {i}, v{T[9]}")
        A(f"v_lshl_add_u32 v{vA[i]}, v{T[10]}, 5, v{T[8]}")
    vA3 = [22, 23]
    ONES = 20
    A(f"v_lshl_add_u32 v{T[8]}, v{G4}, 2, v{RR}")
    A(f"v_mul_u32_u24 v{T[8]}, 224, v{T[8]}")
    A(f"v_lshl_add_u32 v{vA3[0]}, v{C}, 3, v{T[8]}")
    A(f"v_add_u32 v{vA3[0]}, {W1_BASE}, v{vA3[0]}")
    A(f"v_add_u32 v{vA3[1]}, {8*32*224}, v{vA3[0]}")
    A(f"v_mov_b32 v{ONES}, 0x3f803f80")
    A(f"v_mov_b32 v{ONES+1}, 0x3f803f80")
    CS3 = 200; CW = 160
    for r in range(CS3, CS3+28): A(f"v_mov_b32 v{r}, 0")
    def colsum_group(Gbase, cond):
        lab = None
        if cond:
            lab = A.newlabel("Lc3")
            A(f"s_cmp_eq_u32 s{sW}, 0"); A(f"s_cbranch_scc1 {lab}")
        A(f"s_sub_u32 s{sT3}, {Gbase}, s{sW}")
        A(f"s_mul_i32 s{sT3}, s{sT3}, {32*224}")
        A(f"v_add_u32 v{T[11]}, s{sT3}, v{vA3[0]}")
        for i in range(7):
            for u in range(2):
                A(f"ds_read_b64_tr_b16 v[{CW+4*i+2*u}:{CW+4*i+2*u+1}], v{T[11]} offset:{16*u*224 + 32*i}")
        A("s_waitcnt lgkmcnt(0)")
        for u in range(2):
            for i in range(7):
                A(f"{MS} {f4(CS3+4*i)}, v[{CW+4*i+2*u}:{CW+4*i+2*u+1}], v[{ONES}:{ONES+1}], {f4(CS3+4*i)}")
        if lab: A.label(lab)
        A.lg = []
    colsum_group(3, False)
    colsum_group(7, True)
    stamp(A, 15)
    flag_wait(A, 'group', 1, 16)
    stamp(A, 16)
    p2done = A.newlabel("Lp2done")
    A(f"s_cmp_ge_u32 s{sR}, 14")
    A(f"s_cbranch_scc1 {p2done}")
    sOB = 77
    A(f"s_lshl_b32 s{sOB}, s{sTT}, 14")
    A(f"s_add_u32 s{sOB}, s{sOB}, {WS_O}")
    def oload(hd):
        A(f"s_add_u32 s{sT0}, s{sOB}, {(hd//4)*4096}")
        A(f"buffer_load_dwordx4 {f4(OF+4*hd)}, v{vL}, s[{sWS}:{sWS+3}], s{sT0} offen offset:{(hd%4)*1024} sc1", tag=f"o{hd}")
    def wreads(hd):
        out = []
        for i in range(4):
            for u in range(2):
                b = WF + (hd & 1)*16 + 4*i + 2*u
                out.append((f"ds_read_b64_tr_b16 v[{b}:{b+1}], v{vA[i ^ (2*(hd&1))]} offset:{WO_BASE + (28*hd + 8*u)*128}", f"w{hd}"))
        return out
    NPRE = 6
    for hd in range(NPRE): oload(hd)
    for x in wreads(0): do(A, x)
    for hd in range(16):
        if hd + NPRE < 16: oload(hd + NPRE)
        if hd + 1 < 16:
            for x in wreads(hd+1): do(A, x)
        A.wait_lg(f"w{hd}")
        A.wait_vm(f"o{hd}")
        for i in range(4):
            b = WF + (hd & 1)*16 + 4*i
            cc = "0" if hd == 0 else f4(ACC2+4*i)
            A(f"{M16} {f4(ACC2+4*i)}, {f4(b)}, {f4(OF+4*hd)}, {cc}")
    SUM, SQv = T[11], T[12]
    XU = 152
    for i in range(4):
        for d in range(2):
            A(f"v_lshlrev_b32 v{XU}, 16, v{XR+2*i+d}")
            A(f"v_and_b32 v{XU+1}, 0xffff0000, v{XR+2*i+d}")
            A(f"v_add_f32 v{ACC2+4*i+2*d}, v{ACC2+4*i+2*d}, v{XU}")
            A(f"v_add_f32 v{ACC2+4*i+2*d+1}, v{ACC2+4*i+2*d+1}, v{XU+1}")
    HP = 156
    for j in range(8): A(f"v_cvt_pk_bf16_f32 v{HP+j}, v{ACC2+2*j}, v{ACC2+2*j+1}")
    A(f"s_mul_i32 s{sT0}, s{sTT}, 14")
    A(f"s_lshl_b32 s{sT1}, s{sCS}, 1")
    A(f"s_add_u32 s{sT0}, s{sT0}, s{sT1}")
    A(f"s_lshl_b32 s{sT0}, s{sT0}, 10")
    A(f"s_add_u32 s{sT0}, s{sT0}, {WS_H}")
    A(f"buffer_store_dwordx4 {f4(HP)}, v{vL}, s[{sWS}:{sWS+3}], s{sT0} offen sc1")
    A(f"buffer_store_dwordx4 {f4(HP+4)}, v{vL}, s[{sWS}:{sWS+3}], s{sT0} offen offset:1024 sc1")
    A(f"v_mov_b32 v{SUM}, v{ACC2}")
    A(f"v_mul_f32 v{SQv}, v{ACC2}, v{ACC2}")
    for r in range(1, 16):
        A(f"v_add_f32 v{SUM}, v{SUM}, v{ACC2+r}")
        A(f"v_fmac_f32 v{SQv}, v{ACC2+r}, v{ACC2+r}")
    for v in (SUM, SQv):
        for sw in ("v_permlane32_swap_b32", "v_permlane16_swap_b32"):
            A(f"v_mov_b32 v{XU}, v{v}")
            A(f"{sw} v{v}, v{XU}")
            A(f"v_add_f32 v{v}, v{v}, v{XU}")
    A(f"v_mov_b32 v{XU}, v{SUM}")
    A(f"v_mov_b32 v{XU+1}, v{SQv}")
    A(f"s_lshl_b32 s{sT0}, s{sCS}, 3")
    A(f"s_add_u32 s{sT0}, s{sT0}, {WS_ST}")
    A(f"v_lshlrev_b32 v{T[6]}, 6, v{T[6]}")
    A("s_mov_b64 exec, 0xffff")
    A(f"buffer_store_dwordx2 v[{XU}:{XU+1}], v{T[6]}, s[{sWS}:{sWS+3}], s{sT0} offen sc1")
    A("s_mov_b64 exec, -1")
    A("s_waitcnt vmcnt(0)")
    A("s_barrier")
    flag_set(A, 2)
    jn = A.newlabel("Lp2j")
    A(f"s_branch {jn}")
    A.label(p2done)
    A("s_waitcnt vmcnt(0)")
    A("s_barrier")
    A.label(jn)
    A.vm = []
    stamp(A, 17)
    HF = 32; ACC3 = 144; WF3 = 200
    sTT3 = 77
    A(f"s_lshl_b32 s{sTT3}, s{sG}, 3")
    A(f"s_lshl_b32 s{sT0}, s{sW}, 1")
    A(f"s_add_u32 s{sTT3}, s{sTT3}, s{sT0}")
    vDW2 = 16; vA4 = [17, 18, 19, 24]
    sST = 78; sW2O = 79
    dma128_voff(A, vDW2, T[0], T[1], T[2], sCOL)
    A(f"s_mul_i32 s{sST}, s{sW}, 14336")
    A(f"s_mul_i32 s{sW2O}, s{sW}, {448*896}")
    def w2_dma_list(rd):
        out = []
        for m in range(14):
            def f(m=m):
                A(f"s_add_u32 s{sT0}, s{sW2O}, {(rd*112 + m*8)*896}")
                A(f"s_add_u32 m0, s{sST}, {W2ST_BASE + m*1024}")
                A(f"buffer_load_dwordx4 v{vDW2}, s[{sW2}:{sW2+3}], s{sT0} offen lds", tag=f"w2r{rd}")
            out.append(f)
        return out
    def w2_read(rd):
        A.wait_vm(f"w2r{rd}")
        for hs in range(7):
            g = rd*7 + hs
            ks, u = g // 2, g % 2
            for i in range(4):
                a = (ks*4+i)*4 + 2*u
                A(f"ds_read_b64_tr_b16 a[{a}:{a+1}], v{vA4[i]} offset:{W2ST_BASE + hs*16*128}")
        A("s_waitcnt lgkmcnt(0)")
    for f in w2_dma_list(0): f()
    A(f"v_lshl_add_u32 v{T[8]}, v{G4}, 2, v{RR}")
    A(f"v_lshlrev_b32 v{T[8]}, 7, v{T[8]}")
    A(f"v_lshl_add_u32 v{T[8]}, v{C}, 3, v{T[8]}")
    A(f"v_add_u32 v{T[8]}, s{sST}, v{T[8]}")
    A(f"v_and_b32 v{T[9]}, 1, v{G4}")
    A(f"v_lshrrev_b32 v{T[10]}, 1, v{RR}")
    A(f"v_lshl_add_u32 v{T[9]}, v{T[9]}, 1, v{T[10]}")
    for i in range(4):
        A(f"v_xor_b32 v{T[10]}, {i}, v{T[9]}")
        A(f"v_lshl_add_u32 v{vA4[i]}, v{T[10]}, 5, v{T[8]}")
    BR = 240
    A(f"v_lshlrev_b32 v{T[7]}, 3, v{G4}")
    A(f"s_mul_i32 s{sT1}, s{sR}, 224")
    for i in range(7):
        A(f"buffer_load_dwordx2 v[{BR+2*i}:{BR+2*i+1}], v{T[7]}, s[{sB1}:{sB1+3}], s{sT1} offen offset:{32*i}", tag="b1")
    colsum_group(10, False)
    colsum_group(14, True)
    A(f"v_cmp_eq_u32 s[80:81], 1, v{C}")
    A(f"v_cmp_eq_u32 s[82:83], 2, v{C}")
    A(f"v_cmp_eq_u32 s[84:85], 3, v{C}")
    A(f"v_cmp_lt_u32 s[86:87], 15, v1")
    A(f"v_and_b32 v{T[0]}, 15, v1")
    A(f"v_lshlrev_b32 v{T[0]}, 4, v{T[0]}")
    A(f"v_add_u32 v{T[0]}, {W1CS_BASE}, v{T[0]}")
    A(f"s_lshl_b32 s{sT0}, s{sW}, 2")
    A(f"v_add_u32 v{T[1]}, s{sT0}, v{T[0]}")
    w2_read(0)
    for f in w2_dma_list(1): f()
    for i in range(7):
        b = CS3 + 4*i
        A(f"v_cndmask_b32 v{b}, v{b}, v{b+1}, s[80:81]")
        A(f"v_cndmask_b32 v{b}, v{b}, v{b+2}, s[82:83]")
        A(f"v_cndmask_b32 v{b}, v{b}, v{b+3}, s[84:85]")
        for sw in ("v_permlane32_swap_b32", "v_permlane16_swap_b32"):
            A(f"v_mov_b32 v{b+1}, v{b}")
            A(f"{sw} v{b}, v{b+1}")
            A(f"v_add_f32 v{b}, v{b}, v{b+1}")
        A(f"ds_write_b32 v{T[1]}, v{b} offset:{256*i}")
    BU = 224
    A.wait_vm("b1")
    for i in range(7):
        for d in range(2):
            A(f"v_lshlrev_b32 v{T[13]}, 16, v{BR+2*i+d}")
            A(f"v_accvgpr_write_b32 a{BU+4*i+2*d}, v{T[13]}")
            A(f"v_and_b32 v{T[13]}, 0xffff0000, v{BR+2*i+d}")
            A(f"v_accvgpr_write_b32 a{BU+4*i+2*d+1}, v{T[13]}")
    A("s_waitcnt lgkmcnt(0)")
    A("s_barrier")
    CA = 228; CT = 144
    for i in range(7):
        A(f"ds_read_b128 {f4(CT+4*i)}, v{T[0]} offset:{256*i}")
    A("s_waitcnt lgkmcnt(0)")
    for i in range(7):
        b = CT + 4*i
        A(f"v_add_f32 v{b}, v{b}, v{b+1}")
        A(f"v_add_f32 v{b+2}, v{b+2}, v{b+3}")
        A(f"v_add_f32 v{b}, v{b}, v{b+2}")
        A(f"v_cvt_pk_bf16_f32 v{CA+2*i}, v{b}, v{b}")
        A(f"v_lshlrev_b32 v{b+2}, 16, v{CA+2*i}")
        A(f"v_sub_f32 v{b+2}, v{b}, v{b+2}")
        A(f"v_cvt_pk_bf16_f32 v{CA+2*i+1}, v{b+2}, v{b+2}")
    A(f"v_mov_b32 v{CA+14}, 0")
    A(f"v_mov_b32 v{CA+15}, 0")
    A(f"v_and_b32 v{T[6]}, 15, v1")
    A(f"s_lshl_b32 s{sT1}, s{sTT3}, 4")
    A(f"v_add_u32 v{T[6]}, s{sT1}, v{T[6]}")
    A(f"v_lshlrev_b32 v{T[6]}, 6, v{T[6]}")
    A(f"v_lshl_add_u32 v{T[6]}, v{G4}, 4, v{T[6]}")
    A(f"v_cmp_eq_u32 s[82:83], 3, v{G4}")
    sHBs = 80
    A(f"s_mul_i32 s{sHBs}, s{sTT3}, {14*1024}")
    A(f"s_add_u32 s{sHBs}, s{sHBs}, {WS_H}")
    w2_read(1)
    stamp(A, 18)
    flag_wait(A, 'group', 2, 14)
    stamp(A, 19)
    ST = 244
    def hload(ks):
        for t in range(2):
            off = (t*14 + ks) * 1024
            A(f"s_add_u32 s{sT1}, s{sHBs}, {off & ~4095}")
            A(f"buffer_load_dwordx4 {f4(HF+(ks*2+t)*4)}, v{vL}, s[{sWS}:{sWS+3}], s{sT1} offen offset:{off & 4095} sc1", tag=f"h{ks}")
    def wreads3(ks):
        out = []
        for i in range(7):
            for u in range(2):
                base = 0 if ks < 8 else 1
                off = (32*ks + 16*u - (256 if base else 0)) * 224 + 32*i
                b = WF3 + 4*i + 2*u
                out.append((f"ds_read_b64_tr_b16 v[{b}:{b+1}], v{vA3[base]} offset:{off}", f"w{ks}_{i}"))
        return out
    HPRE = 4
    hload(0)
    A(f"s_mov_b32 s{sT1}, {WS_ST}")
    for t in range(2):
        A(f"buffer_load_dwordx4 {f4(ST+4*t)}, v{T[6]}, s[{sWS}:{sWS+3}], s{sT1} offen offset:{1024*t} sc1", tag="st")
    for ks in range(1, HPRE): hload(ks)
    for x in wreads3(0): do(A, x)
    w2d2 = w2_dma_list(2)
    MEAN = [T[9], T[10]]; RSTD3 = [T[11], T[12]]; XC3 = [20, 21]
    def stats():
        A.wait_vm("st")
        for t in range(2):
            b = ST + 4*t
            A(f"v_cndmask_b32 v{b+2}, v{b+2}, 0, s[82:83]")
            A(f"v_cndmask_b32 v{b+3}, v{b+3}, 0, s[82:83]")
            A(f"v_add_f32 v{b}, v{b}, v{b+2}")
            A(f"v_add_f32 v{b+1}, v{b+1}, v{b+3}")
            for v in (b, b+1):
                for sw in ("v_permlane32_swap_b32", "v_permlane16_swap_b32"):
                    A(f"v_mov_b32 v{b+2}, v{v}")
                    A(f"{sw} v{v}, v{b+2}")
                    A(f"v_add_f32 v{v}, v{v}, v{b+2}")
            A(f"v_mul_f32 v{MEAN[t]}, {f32bits(1.0/448):#x}, v{b}")
            A(f"v_mul_f32 v{b+1}, {f32bits(1.0/448):#x}, v{b+1}")
            A(f"v_fma_f32 v{b+1}, -v{MEAN[t]}, v{MEAN[t]}, v{b+1}")
            A(f"v_max_f32 v{b+1}, 0, v{b+1}")
            A(f"v_add_f32 v{b+1}, {f32bits(1e-5):#x}, v{b+1}")
            A(f"v_rsq_f32 v{RSTD3[t]}, v{b+1}")
            A(f"v_sub_f32 v{b}, 0, v{MEAN[t]}")
            A(f"v_cvt_pk_bf16_f32 v{b+1}, v{b}, v{b}")
            A(f"v_lshlrev_b32 v{b+1}, 16, v{b+1}")
            A(f"v_sub_f32 v{b+1}, v{b}, v{b+1}")
            A(f"v_cvt_pk_bf16_f32 v{XC3[t]}, v{b}, v{b+1}")
            A(f"v_cndmask_b32 v{XC3[t]}, v{XC3[t]}, 0, s[86:87]")
    for ks in range(14):
        A.wait_vm(f"h{ks}")
        nxt = wreads3(ks+1) if ks + 1 < 14 else []
        for i in range(7):
            A.wait_lg(f"w{ks}_{i}")
            b = WF3 + 4*i
            for t in range(2):
                a = ACC3 + (i*2+t)*4
                cc = "0" if ks == 0 else f4(a)
                A(f"{M16} {f4(a)}, {f4(b)}, {f4(HF+(ks*2+t)*4)}, {cc}")
            for x in nxt[2*i:2*i+2]: do(A, x)
            if i == 1 and ks + HPRE < 14: hload(ks + HPRE)
            if ks >= 10 and w2d2 and i in (1, 3, 5): w2d2.pop(0)()
        if ks == 6: stats()
    XF = [200, 204]
    for t in range(2):
        A(f"v_mov_b32 v{XF[t]}, v{XC3[t]}")
        A(f"v_mov_b32 v{XF[t]+1}, v{XC3[t]}")
        A(f"v_mov_b32 v{XF[t]+2}, 0")
        A(f"v_mov_b32 v{XF[t]+3}, 0")
    for i in range(7):
        for t in range(2):
            a = ACC3 + (i*2+t)*4
            A(f"{M16} {f4(a)}, {f4(CA+2*i)}, {f4(XF[t])}, {f4(a)}")
    while w2d2: w2d2.pop(0)()
    stamp(A, 20)
    A(f"s_mul_i32 s{sT2}, s{sR}, 7")
    A(f"s_mul_i32 s{sT3}, s{sTT3}, {56*1024}")
    A(f"s_add_u32 s{sT3}, s{sT3}, {WS_HID}")
    BT = 208
    for i in range(7):
        for j in range(4): A(f"v_accvgpr_read_b32 v{BT+j}, a{BU+4*i+j}")
        A(f"s_add_u32 s{sT0}, s{sT2}, {i}")
        A(f"s_lshr_b32 s{sT1}, s{sT0}, 1")
        A(f"s_and_b32 s{sT0}, s{sT0}, 1")
        A(f"s_lshl_b32 s{sT1}, s{sT1}, 10")
        A(f"s_lshl_b32 s{sT0}, s{sT0}, 3")
        A(f"s_add_u32 s{sT0}, s{sT0}, s{sT1}")
        A(f"s_add_u32 s{sT0}, s{sT0}, s{sT3}")
        for t in range(2):
            a = ACC3 + (i*2+t)*4
            for j in range(4):
                A(f"v_fma_f32 v{a+j}, v{a+j}, v{RSTD3[t]}, v{BT+j}")
                A(f"v_max_f32 v{a+j}, 0, v{a+j}")
                A(f"v_mul_f32 v{a+j}, v{a+j}, v{a+j}")
            A(f"v_cvt_pk_bf16_f32 v{a}, v{a}, v{a+1}")
            A(f"v_cvt_pk_bf16_f32 v{a+1}, v{a+2}, v{a+3}")
            if t == 1: A(f"s_add_u32 s{sT0}, s{sT0}, {56*1024}")
            A(f"buffer_store_dwordx2 v[{a}:{a+1}], v{vL}, s[{sWS}:{sWS+3}], s{sT0} offen sc1", tag="hst")
    w2_read(2)
    w2d3 = w2_dma_list(3)
    for f in w2d3[:6]: f()
    A.wait_vm("hst")
    A("s_barrier")
    flag_set(A, 3)
    A(f"s_cmp_ge_u32 s{sR}, 14")
    A(f"s_cbranch_scc1 Lfin")
    for f in w2d3[6:]: f()
    sTT4 = 77
    A(f"s_lshl_b32 s{sTT4}, s{sG}, 3")
    A(f"s_lshl_b32 s{sT0}, s{sTH}, 2")
    A(f"s_add_u32 s{sTT4}, s{sTT4}, s{sT0}")
    ACC4 = 32; BF = 96; NB = 12
    HR = 224; B2 = 232
    A(f"v_lshlrev_b32 v{T[11]}, 3, v{G4}")
    for i in range(4):
        A(f"buffer_load_dwordx2 v[{B2+2*i}:{B2+2*i+1}], v{T[11]}, s[{sB2}:{sB2+3}], s{sCOL} offen offset:{32*i}", tag="hr")
    A(f"s_add_u32 s{sT0}, s{sTT4}, s{sW}")
    A(f"s_mul_i32 s{sT0}, s{sT0}, 14")
    A(f"s_lshl_b32 s{sT2}, s{sCS}, 1")
    A(f"s_add_u32 s{sT0}, s{sT0}, s{sT2}")
    A(f"s_lshl_b32 s{sT0}, s{sT0}, 10")
    A(f"s_add_u32 s{sT0}, s{sT0}, {WS_H}")
    A(f"buffer_load_dwordx4 {f4(HR)}, v{vL}, s[{sWS}:{sWS+3}], s{sT0} offen sc1", tag="hr")
    A(f"buffer_load_dwordx4 {f4(HR+4)}, v{vL}, s[{sWS}:{sWS+3}], s{sT0} offen offset:1024 sc1", tag="hr")
    sHB = 80
    A(f"s_mul_i32 s{sHB}, s{sTT4}, {56*1024}")
    A(f"s_mul_i32 s{sT2}, s{sW}, {14*1024}")
    A(f"s_add_u32 s{sHB}, s{sHB}, s{sT2}")
    A(f"s_add_u32 s{sHB}, s{sHB}, {WS_HID}")
    w2_read(3)
    stamp(A, 21)
    flag_wait(A, 'group', 3, 16)
    stamp(A, 22)
    def bload(q):
        ks, tt = q // 4, q % 4
        off = tt*56*1024 + ks*1024
        slot = q % NB
        A(f"s_add_u32 s{sT0}, s{sHB}, {off}")
        A(f"buffer_load_dwordx4 {f4(BF+4*slot)}, v{vL}, s[{sWS}:{sWS+3}], s{sT0} offen sc1", tag=f"b{q}")
    for q in range(NB): bload(q)
    for q in range(56):
        ks, tt = q // 4, q % 4
        slot = q % NB
        A.wait_vm(f"b{q}")
        for i in range(4):
            a = ACC4 + (tt*4+i)*4
            cc = "0" if ks == 0 else f4(a)
            wa = (ks*4+i)*4
            A(f"{M16} {f4(a)}, a[{wa}:{wa+3}], {f4(BF+4*slot)}, {cc}")
        if q + NB < 56: bload(q + NB)
    stamp(A, 23)
    A("s_barrier")
    A(f"s_lshl_b32 s{sT0}, s{sW}, 14")
    A(f"v_add_u32 v{T[0]}, s{sT0}, v{vL}")
    for tt in range(4):
        for i in range(4):
            a = ACC4 + (tt*4+i)*4
            A(f"ds_write_b128 v{T[0]}, {f4(a)} offset:{(tt*4+i)*1024}")
    A("s_waitcnt lgkmcnt(0)")
    A("s_barrier")
    A(f"s_lshl_b32 s{sT0}, s{sW}, 12")
    A(f"v_add_u32 v{T[0]}, s{sT0}, v{vL}")
    RB = 96
    for w2 in range(4):
        for i in range(4):
            A(f"ds_read_b128 {f4(RB+(w2*4+i)*4)}, v{T[0]} offset:{w2*16384 + i*1024}")
    A("s_waitcnt lgkmcnt(0)")
    for i in range(4):
        for j in range(4):
            r = RB + 4*i + j
            A(f"v_add_f32 v{r}, v{r}, v{r+16}")
            A(f"v_add_f32 v{r+32}, v{r+32}, v{r+48}")
            A(f"v_add_f32 v{r}, v{r}, v{r+32}")
        for d in range(2):
            for src in (HR, B2):
                A(f"v_lshlrev_b32 v{T[1]}, 16, v{src+2*i+d}")
                A(f"v_and_b32 v{T[2]}, 0xffff0000, v{src+2*i+d}")
                A(f"v_add_f32 v{RB+4*i+2*d}, v{RB+4*i+2*d}, v{T[1]}")
                A(f"v_add_f32 v{RB+4*i+2*d+1}, v{RB+4*i+2*d+1}, v{T[2]}")
    PKD = 176
    for i in range(4):
        A(f"v_cvt_pk_bf16_f32 v{PKD+2*i}, v{RB+4*i}, v{RB+4*i+1}")
        A(f"v_cvt_pk_bf16_f32 v{PKD+2*i+1}, v{RB+4*i+2}, v{RB+4*i+3}")
    for pr in range(2):
        b = PKD + 4*pr
        A(f"v_permlane16_swap_b32 v{b}, v{b+2}")
        A(f"v_permlane16_swap_b32 v{b+1}, v{b+3}")
    A(f"s_add_u32 s{sT0}, s{sTT4}, s{sW}")
    A(f"s_lshl_b32 s{sT0}, s{sT0}, 4")
    A(f"v_and_b32 v{T[1]}, 15, v1")
    A(f"v_add_u32 v{T[1]}, s{sT0}, v{T[1]}")
    A(f"v_mul_u32_u24 v{T[1]}, 896, v{T[1]}")
    A(f"v_and_b32 v{T[2]}, 1, v{G4}")
    A(f"v_lshl_add_u32 v{T[1]}, v{T[2]}, 5, v{T[1]}")
    A(f"v_lshrrev_b32 v{T[2]}, 1, v{G4}")
    A(f"v_lshl_add_u32 v{T[1]}, v{T[2]}, 4, v{T[1]}")
    for pr in range(2):
        b = PKD + 4*pr
        A(f"buffer_store_dwordx4 {f4(b)}, v{T[1]}, s[{sOUT}:{sOUT+3}], s{sCOL} offen offset:{64*pr}")
    A.label("Lfin")
    stamp(A, 24)
    stamp_dump(A)
    A.label("Lend")
    A("s_endpgm")

def build(path):
    out = HDR
    out += f"; @launch grid=(256,1,1) block=(256,1,1) lds={LDS_TOTAL}\n"
    out += '.amdgcn_target "amdgcn-amd-amdhsa--gfx950"\n.text\n'
    A = Asm()
    kernel(A)
    out += A.text()
    out += f""".section .rodata,"a"
.p2align 6
.amdhsa_kernel {KNAME}
  .amdhsa_next_free_vgpr 512
  .amdhsa_next_free_sgpr 100
  .amdhsa_accum_offset 256
  .amdhsa_group_segment_fixed_size 0
  .amdhsa_kernarg_size 88
  .amdhsa_user_sgpr_count 2
  .amdhsa_user_sgpr_kernarg_segment_ptr 1
  .amdhsa_system_sgpr_workgroup_id_x 1
  .amdhsa_float_denorm_mode_32 3
  .amdhsa_float_denorm_mode_16_64 3
.end_amdhsa_kernel
"""
    print("lines", len(A.lines), "nops", A.nop_count, file=sys.stderr)
    open(path, "w").write(out)

if __name__ == "__main__":
    args = [a for a in sys.argv[1:] if not a.startswith("--")]
    for a in sys.argv[1:]:
        if a.startswith("--"): OPT[a[2:]] = True
    build(args[0] if args else "f.s")
```

```python
import sys, math
sys.path.insert(0, 'dev')
from asmlib import *

NAME = "sequential_preLN__sliding_block__dense_activation_squared_relu__prompt"
KNAME = NAME + "_kernel"
REF = f'cdna_kernels/{NAME}.s.ref'
HDR = open(REF).read().split('; Override')[0]

S, D, H, DH, F = 2048, 448, 16, 28, 1792
WS_O   = 0x000000
WS_H   = 0x200000
WS_ST  = 0x400000
WS_HID = 0x480000
WS_KV  = 0xC00000
WS_FLAG= 0x1000000
FL_A = WS_FLAG
FL_B = WS_FLAG + 0x2000
FL_C = WS_FLAG + 0x4000
FL_D = WS_FLAG + 0x6000
FL_W = WS_FLAG + 0xA000
WS_W2T = 0x1100000
WS_DBG = 0x1800000
sX, sWQKV, sWO, sW1, sB1, sW2, sB2, sOUT, sWS, sDBG = 28, 32, 36, 40, 44, 48, 52, 56, 60, 64
sG, sR, sW = 68, 69, 70
sT0, sT1, sT2, sT3 = 71, 72, 73, 74
sP = 96
sEP = 4
sHI = 6
sFL = 8

MF = "v_mfma_f32_32x32x16_bf16"
M16 = "v_mfma_f32_16x16x32_bf16"
MS = "v_mfma_f32_4x4x4_16b_bf16"
f4 = lambda b: f"v[{b}:{b+3}]"
f16 = lambda b: f"v[{b}:{b+15}]"

def f32bits(x):
    import struct
    return struct.unpack('<I', struct.pack('<f', x))[0]

OPT = dict(stamps=False)

def srd(A, d, p, size):
    A(f"s_mov_b32 s{d}, s{p}")
    A(f"s_and_b32 s{d+1}, s{p+1}, 0xffff")
    A(f"s_mov_b32 s{d+2}, {size}")
    A(f"s_mov_b32 s{d+3}, 0x20000")

def stamp(A, idx):
    if not OPT['stamps']: return
    A("s_waitcnt lgkmcnt(0)")
    A("s_memtime s[98:99]")
    A("s_waitcnt lgkmcnt(0)")
    A(f"v_writelane_b32 v255, s98, {idx}")
    A.lg = []
def stamp_dump(A):
    if not OPT['stamps']: return
    A(f"s_lshl_b32 s{sT0}, s2, 2")
    A(f"s_add_u32 s{sT0}, s{sT0}, s{sW}")
    A(f"s_lshl_b32 s{sT0}, s{sT0}, 8")
    A(f"s_add_u32 s{sT0}, s{sT0}, {WS_DBG}")
    A("v_lshlrev_b32 v254, 2, v1")
    A(f"buffer_store_dword v255, v254, s[{sWS}:{sWS+3}], s{sT0} offen")

def do(A, x):
    if callable(x): x()
    elif isinstance(x, tuple): A(x[0], tag=x[1])
    else: A(x)

def interleave(A, main, fill):
    n, m = len(main), len(fill)
    j = 0
    for i, x in enumerate(main):
        do(A, x)
        want = (i + 1) * m // n
        while j < want:
            do(A, fill[j]); j += 1
    while j < m:
        do(A, fill[j]); j += 1

def merge_even(a, b):
    out = []; na, nb = len(a), len(b); tot = na + nb; ai = bi = 0
    for q in range(tot):
        if ai < na and (ai * tot <= q * na or bi >= nb):
            out.append(a[ai]); ai += 1
        else:
            out.append(b[bi]); bi += 1
    return out

def l2_prefetch_list(A, srdreg, total_bytes, vtmp, vdst, sidx4):
    per = (total_bytes // 128 + 127) // 128 * 128
    nl = per // 128
    n = (nl + 63) // 64
    out = []
    for k in range(n):
        def f(k=k):
            A(f"v_add_u32 v{vtmp}, {64*k}, v1")
            A(f"v_min_u32 v{vtmp}, {nl-1}, v{vtmp}")
            A(f"v_lshlrev_b32 v{vtmp}, 7, v{vtmp}")
            A(f"s_mul_i32 s{sT3}, s{sidx4}, {per}")
            A(f"buffer_load_dword v{vdst}, v{vtmp}, s[{srdreg}:{srdreg+3}], s{sT3} offen", tag="pf")
        out.append(f)
    return out

def prologue(A):
    A.raw(f".globl {KNAME}\n.p2align 8\n.type {KNAME},@function\n{KNAME}:")
    A(f"s_cmp_ge_u32 s2, 256")
    A(f"s_cbranch_scc1 Lend")
    A("s_load_dwordx16 s[4:19], s[0:1], 0")
    A("s_load_dwordx4 s[20:23], s[0:1], 64")
    A("s_load_dwordx2 s[24:25], s[0:1], 80")
    A(f"s_and_b32 s{sG}, s2, 7")
    A(f"s_lshl_b32 s{sG}, s{sG}, 1")
    A(f"s_lshr_b32 s{sT0}, s2, 7")
    A(f"s_add_u32 s{sG}, s{sG}, s{sT0}")
    A(f"s_lshr_b32 s{sR}, s2, 3")
    A(f"s_and_b32 s{sR}, s{sR}, 15")
    A("v_lshrrev_b32 v2, 6, v0")
    A("v_and_b32 v1, 63, v0")
    A(f"v_readfirstlane_b32 s{sW}, v2")

def map4(A):
    A(f"s_and_b32 s{sT0}, s2, 7")
    A(f"s_lshr_b32 s{sT1}, s2, 3")
    A(f"s_and_b32 s{sG}, s{sT0}, 3")
    A(f"s_lshl_b32 s{sG}, s{sG}, 2")
    A(f"s_lshr_b32 s{sT2}, s{sT1}, 3")
    A(f"s_add_u32 s{sG}, s{sG}, s{sT2}")
    A(f"s_lshr_b32 s{sR}, s{sT0}, 2")
    A(f"s_lshl_b32 s{sR}, s{sR}, 3")
    A(f"s_and_b32 s{sT2}, s{sT1}, 7")
    A(f"s_add_u32 s{sR}, s{sR}, s{sT2}")
def map2(A):
    A(f"s_and_b32 s{sG}, s2, 7")
    A(f"s_lshl_b32 s{sG}, s{sG}, 1")
    A(f"s_lshr_b32 s{sT0}, s2, 7")
    A(f"s_add_u32 s{sG}, s{sG}, s{sT0}")
    A(f"s_lshr_b32 s{sR}, s2, 3")
    A(f"s_and_b32 s{sR}, s{sR}, 15")

def prologue2(A):
    A("s_waitcnt lgkmcnt(0)")
    srd(A, sX, 4, S*D*2)
    srd(A, sWQKV, 6, D*3*D*2)
    srd(A, sWS, 24, 0x10000000)
    srd(A, sDBG, 22, 256)

def prologue3(A):
    srd(A, sWO, 8, D*D*2)
    srd(A, sW1, 12, D*F*2)
    srd(A, sB1, 14, F*2)
    srd(A, sW2, 16, F*D*2)
    srd(A, sB2, 18, D*2)
    srd(A, sOUT, 20, S*D*2)
    A(f"s_mov_b32 s{sHI}, 0")
    A(f"s_mov_b32 s{sHI+1}, -1")
    A(f"s_lshl_b32 s{sFL}, s{sG}, 4")
    A(f"s_add_u32 s{sFL}, s{sFL}, s{sR}")

def epoch_publish(A):
    lab = A.newlabel("Lep")
    A(f"s_or_b32 s{sT0}, s2, s{sW}")
    A(f"s_cmp_lg_u32 s{sT0}, 0")
    A(f"s_cbranch_scc1 {lab}")
    A(f"s_memrealtime s[{sP}:{sP+1}]")
    A("s_waitcnt lgkmcnt(0)")
    A(f"s_or_b32 s{sP+1}, s{sP+1}, 0x80000000")
    A(f"v_mov_b32 v2, s{sP}")
    A(f"v_mov_b32 v3, s{sP+1}")
    A(f"v_mov_b32 v4, 0")
    A("s_mov_b64 exec, 1")
    A(f"buffer_store_dwordx2 v[2:3], v4, s[{sDBG}:{sDBG+3}], 0 offen sc1")
    A("s_mov_b64 exec, -1")
    A.vm.pop(); A.vmregs.pop()
    A.label(lab)

def epoch_fetch(A):
    loop = A.newlabel("Lefp")
    A(f"v_mov_b32 v4, 0")
    A(f"s_mov_b32 s{sT1}, 0")
    A.label(loop)
    A(f"buffer_load_dwordx2 v[2:3], v4, s[{sDBG}:{sDBG+3}], 0 offen sc1")
    A(f"s_add_u32 s{sT1}, s{sT1}, 1")
    A(f"s_cmp_gt_u32 s{sT1}, 0x40000")
    A(f"s_cbranch_scc1 Lend")
    A("s_waitcnt vmcnt(0)")
    A(f"v_readfirstlane_b32 s{sEP+1}, v3")
    A(f"v_readfirstlane_b32 s{sEP}, v2")
    A(f"s_cmp_eq_u32 s{sEP+1}, 0")
    A(f"s_cbranch_scc1 {loop}")

def poll(A, nlanes, setup_addr):
    loop = A.newlabel("Lpoll")
    setup_addr()
    A(f"s_bfm_b64 exec, {nlanes}, 0")
    A(f"s_mov_b32 s{sT1}, 0")
    A.label(loop)
    A(f"buffer_load_dwordx2 v[2:3], v4, s[{sWS}:{sWS+3}], 0 offen sc1")
    A(f"s_add_u32 s{sT1}, s{sT1}, 1")
    A(f"s_cmp_gt_u32 s{sT1}, 0x40000")
    A(f"s_cbranch_scc1 Lend")
    A("s_waitcnt vmcnt(0)")
    A(f"v_cmp_ne_u32 vcc, s{sEP}, v2")
    A(f"v_cmp_ne_u32 s[{sP}:{sP+1}], s{sEP+1}, v3")
    A(f"s_or_b64 vcc, vcc, s[{sP}:{sP+1}]")
    A(f"s_cbranch_vccnz {loop}")
    A("s_mov_b64 exec, -1")

def flag_store(A, soff_setup):
    soff_setup()
    A(f"v_mov_b32 v2, s{sEP}")
    A(f"v_mov_b32 v3, s{sEP+1}")
    A(f"v_mov_b32 v4, 0")
    A("s_mov_b64 exec, 1")
    A(f"buffer_store_dwordx2 v[2:3], v4, s[{sWS}:{sWS+3}], s{sT0} offen sc1")
    A("s_mov_b64 exec, -1")

W_BASE = 0
XR_BASE = 86016
CS_BASE = 160256
RS_BASE = CS_BASE + 3072
KV_BASE = 111104
WO_BASE = 0
W1_BASE = 58368
W1CS_BASE = W1_BASE + 100352
LDS_TOTAL = 163840
W2T_LDS = 151552
W1A_G = 7

def lane_tr_common(A, vG4, vRR, vC):
    A(f"v_lshrrev_b32 v{vG4}, 4, v1")
    A(f"v_bfe_u32 v{vRR}, v1, 2, 2")
    A(f"v_and_b32 v{vC}, 3, v1")

def dma128_voff(A, dst, t0, t1, t2, sCOL):
    A(f"v_lshrrev_b32 v{t0}, 3, v1")
    A(f"v_and_b32 v{t1}, 7, v1")
    A(f"v_bfe_u32 v{t2}, v{t0}, 1, 2")
    A(f"v_lshlrev_b32 v{t2}, 1, v{t2}")
    A(f"v_xor_b32 v{t1}, v{t1}, v{t2}")
    A(f"v_lshlrev_b32 v{t1}, 4, v{t1}")
    A(f"v_mul_u32_u24 v{t0}, 896, v{t0}")
    A(f"v_add3_u32 v{dst}, v{t0}, v{t1}, s{sCOL}")

def kernel(A):
    prologue(A)
    if OPT.get('map4'): map4(A)
    sL = sFL
    aq, ak, av = 16, 32, 48
    XB = [64, 80]
    SQ = [96, 100]; CS = [104, 108, 112]; ONES = 116
    vOW = [118, 119, 120]; vOX = [121, 122]
    vXR = [123, 124, 125, 126]; vWR = [127, 128]
    T = list(range(130, 170))
    QF = 240
    sRING, sWOFF, sWM0 = 75, 76, 77
    sI = [78, 79, 80, 81]
    sM1, sM2, sM3 = 82, 84, 86
    sOH = 90
    sCOL, sCS, sTH, sKV, sX4 = 91, 92, 93, 94, 95
    for i in range(4): A(f"s_mov_b32 s{sI[i]}, {i*7168}")
    A(f"s_mul_i32 s{sT0}, s{sR}, 56")
    A(f"s_and_b32 s{sOH}, s{sT0}, 15")
    A(f"s_andn2_b32 s{sT0}, s{sT0}, 15")
    A(f"s_mul_i32 s{sWOFF}, s{sW}, {16*2688}")
    A(f"s_add_u32 s{sWOFF}, s{sWOFF}, s{sT0}")
    A(f"s_mul_i32 s{sWM0}, s{sW}, 3072")
    A(f"s_lshl_b32 s{sRING}, s{sW}, 14")
    A(f"s_add_u32 s{sRING}, s{sRING}, {XR_BASE}")
    for p in range(3):
        A(f"v_add_u32 v{T[0]}, {64*p}, v1")
        A(f"v_mul_u32_u24 v{T[1]}, 43691, v{T[0]}")
        A(f"v_lshrrev_b32 v{T[1]}, 19, v{T[1]}")
        A(f"v_mul_u32_u24 v{T[2]}, 12, v{T[1]}")
        A(f"v_sub_u32 v{T[2]}, v{T[0]}, v{T[2]}")
        A(f"v_lshrrev_b32 v{T[3]}, 2, v{T[2]}")
        A(f"v_and_b32 v{T[2]}, 3, v{T[2]}")
        A(f"v_mul_u32_u24 v{T[1]}, 2688, v{T[1]}")
        A(f"v_mul_u32_u24 v{T[3]}, 896, v{T[3]}")
        A(f"v_lshlrev_b32 v{T[2]}, 4, v{T[2]}")
        A(f"v_add3_u32 v{vOW[p]}, v{T[1]}, v{T[3]}, v{T[2]}")
    A(f"s_lshl_b32 s{sT0}, s{sG}, 7")
    A(f"s_lshl_b32 s{sT1}, s{sW}, 5")
    A(f"s_add_u32 s{sT0}, s{sT0}, s{sT1}")
    A(f"s_mul_i32 s{sT0}, s{sT0}, 896")
    A(f"v_lshrrev_b32 v{T[0]}, 3, v1")
    A(f"v_mul_u32_u24 v{T[0]}, 896, v{T[0]}")
    A(f"v_add_u32 v{T[0]}, s{sT0}, v{T[0]}")
    A(f"v_and_b32 v{T[1]}, 7, v1")
    A(f"v_lshrrev_b32 v{T[2]}, 4, v1")
    A(f"v_xor_b32 v{T[1]}, v{T[1]}, v{T[2]}")
    A(f"v_xor_b32 v{T[2]}, 4, v{T[1]}")
    A(f"v_lshl_add_u32 v{vOX[0]}, v{T[1]}, 4, v{T[0]}")
    A(f"v_lshl_add_u32 v{vOX[1]}, v{T[2]}, 4, v{T[0]}")
    prologue2(A)
    stamp(A, 0)
    sWS2 = 89
    def dma_w_list(kb):
        out = []
        for p in range(3):
            def f(p=p):
                if p == 0: A(f"s_add_u32 s{sWS2}, s{sWOFF}, {kb*4*16*2688}")
                A(f"s_add_u32 m0, s{sWM0}, {W_BASE + (12*kb+p)*1024}")
                A(f"buffer_load_dwordx4 v{vOW[p]}, s[{sWQKV}:{sWQKV+3}], s{sWS2} offen lds", tag=f"W{kb}")
            out.append(f)
        return out
    def dma_x_list(u):
        slot = u & 3
        out = []
        for i in range(4):
            def f(i=i):
                A(f"s_add_u32 m0, s{sRING}, {slot*4096 + i*1024 - u*128}")
                A(f"buffer_load_dwordx4 v{vOX[i&1]}, s[{sX}:{sX+3}], s{sI[i]} offen offset:{u*128} lds", tag=f"X{u}")
            out.append(f)
        return out
    for kb in range(2):
        for f in dma_w_list(kb): f()
        for f in dma_x_list(kb): f()
    A(f"s_lshr_b32 s{sX4}, s2, 3")
    A(f"s_lshl_b32 s{sX4}, s{sX4}, 2")
    A(f"s_add_u32 s{sX4}, s{sX4}, s{sW}")
    if OPT.get('pf0', False):
        A(f"s_lshl_b32 s{sT0}, s{sX4}, 13")
        A(f"v_lshlrev_b32 v{T[10]}, 7, v1")
        A(f"buffer_load_dword v239, v{T[10]}, s[{sWQKV}:{sWQKV+3}], s{sT0} offen", tag="pf0")
        A(f"s_and_b32 s{sT1}, s2, 7")
        A(f"s_mul_i32 s{sT1}, s{sT1}, {256*896}")
        A(f"s_add_u32 s{sT1}, s{sT1}, s{sT0}")
        A(f"s_cmp_lt_u32 s{sX4}, 28")
        A(f"s_cselect_b32 s{sT1}, s{sT1}, 0x7ffff000")
        A(f"buffer_load_dword v239, v{T[10]}, s[{sX}:{sX+3}], s{sT1} offen", tag="pf0")
        A(f"s_add_u32 s{sT0}, s{sT0}, {1 << 20}")
        A(f"buffer_load_dword v239, v{T[10]}, s[{sWQKV}:{sWQKV+3}], s{sT0} offen", tag="pf0")
    epoch_publish(A)
    prologue3(A)
    def tlb_list():
        out = []
        def f0():
            A(f"v_lshlrev_b32 v{T[10]}, 21, v1")
            A(f"v_min_u32 v{T[10]}, {10 << 21}, v{T[10]}")
            A(f"buffer_load_dword v239, v{T[10]}, s[{sWS}:{sWS+3}], 0 offen", tag="tlb")
        out.append(f0)
        for srdreg in (sOUT, sB1, sB2):
            def f(srdreg=srdreg):
                A(f"v_lshlrev_b32 v{T[11]}, 21, v1")
                A(f"buffer_load_dword v239, v{T[11]}, s[{srdreg}:{srdreg+3}], 0 offen", tag="tlb")
            out.append(f)
        return out
    A(f"s_min_u32 s{sT0}, s{sR}, 13")
    A(f"s_and_b32 s{sTH}, s{sT0}, 1")
    A(f"s_lshr_b32 s{sCS}, s{sT0}, 1")
    A(f"s_lshl_b32 s{sCOL}, s{sCS}, 7")
    vRJ = list(range(224, 231))
    for p in range(7):
        A(f"v_add_u32 v{T[3]}, {64*p}, v1")
        A(f"v_mul_u32_u24 v{T[4]}, 18725, v{T[3]}")
        A(f"v_lshrrev_b32 v{T[4]}, 18, v{T[4]}")
        A(f"v_mul_u32_u24 v{T[5]}, 14, v{T[4]}")
        A(f"v_sub_u32 v{T[5]}, v{T[3]}, v{T[5]}")
        A(f"v_lshl_or_b32 v{vRJ[p]}, v{T[5]}, 8, v{T[4]}")
    sW2K, sW2Q = 10, 11
    sW2ON = 12
    lw = A.newlabel("Lw2t")
    A(f"s_mov_b32 s{sW2ON}, 0")
    A(f"s_cmp_lg_u32 s{sW}, 3"); A(f"s_cbranch_scc1 {lw}")
    A(f"s_cmp_ge_u32 s{sL}, 224"); A(f"s_cbranch_scc1 {lw}")
    A(f"s_mov_b32 s{sW2ON}, 1")
    A(f"s_lshr_b32 s{sW2K}, s{sL}, 2")
    A(f"s_and_b32 s{sW2Q}, s{sL}, 3")
    A(f"s_mul_i32 s{sT0}, s{sW2K}, 37")
    A(f"s_lshr_b32 s{sT0}, s{sT0}, 8")
    A(f"s_mul_i32 s{sT1}, s{sT0}, 7")
    A(f"s_sub_u32 s{sT1}, s{sW2K}, s{sT1}")
    A(f"s_mul_i32 s{sT0}, s{sT0}, 14")
    A(f"s_lshr_b32 s{sT2}, s{sT1}, 1")
    A(f"s_mul_i32 s{sT2}, s{sT2}, 7")
    A(f"s_and_b32 s{sT3}, s{sT1}, 1")
    A(f"s_lshl_b32 s{sT3}, s{sT3}, 1")
    A(f"s_add_u32 s{sT2}, s{sT2}, s{sT3}")
    A(f"s_sub_u32 s{sT3}, s{sT1}, 4")
    A(f"s_mul_i32 s{sT3}, s{sT3}, 7")
    A(f"s_add_u32 s{sT3}, s{sT3}, 4")
    A(f"s_cmp_ge_u32 s{sT1}, 4")
    A(f"s_cselect_b32 s{sT2}, s{sT3}, s{sT2}")
    A(f"s_cmp_eq_u32 s{sT1}, 6")
    A(f"s_cselect_b32 s{sT2}, 6, s{sT2}")
    A(f"s_cselect_b32 s{sT3}, {96*896}, 0")
    A(f"s_add_u32 s{sT2}, s{sT2}, s{sT0}")
    A(f"s_mul_i32 s{sT2}, s{sT2}, {16*896}")
    A(f"s_mul_i32 s{sT0}, s{sW2Q}, 224")
    A(f"s_add_u32 s{sT2}, s{sT2}, s{sT0}")
    for p in range(7):
        A(f"v_and_b32 v{T[3]}, 0xff, v{vRJ[p]}")
        A(f"v_lshrrev_b32 v{T[4]}, 8, v{vRJ[p]}")
        A(f"v_mul_u32_u24 v{T[5]}, 896, v{T[3]}")
        A(f"v_lshl_add_u32 v{T[5]}, v{T[4]}, 4, v{T[5]}")
        A(f"v_cmp_lt_u32 vcc, 15, v{T[3]}")
        A(f"v_mov_b32 v{T[6]}, s{sT3}")
        A(f"v_cndmask_b32 v{T[6]}, 0, v{T[6]}, vcc")
        A(f"v_add_u32 v{T[5]}, v{T[5]}, v{T[6]}")
        A(f"s_mov_b32 m0, {W2T_LDS + p*1024}")
        A(f"buffer_load_dwordx4 v{T[5]}, s[{sW2}:{sW2+3}], s{sT2} offen lds")
        A.vm.pop(); A.vmregs.pop()
    A.label(lw)
    A(f"v_and_b32 v{T[0]}, 31, v1")
    A(f"v_lshrrev_b32 v{T[1]}, 5, v1")
    A(f"v_bfe_u32 v{T[2]}, v{T[0]}, 1, 3")
    A(f"v_xor_b32 v{T[2]}, v{T[2]}, v{T[1]}")
    A(f"v_lshlrev_b32 v{T[3]}, 7, v{T[0]}")
    A(f"v_add_u32 v{T[3]}, s{sRING}, v{T[3]}")
    for s in range(4):
        A(f"v_xor_b32 v{T[4]}, {2*s}, v{T[2]}")
        A(f"v_lshl_add_u32 v{vXR[s]}, v{T[4]}, 4, v{T[3]}")
    A(f"v_bfe_u32 v{T[2]}, v1, 2, 2")
    A(f"v_lshl_add_u32 v{T[2]}, v{T[1]}, 3, v{T[2]}")
    A(f"v_mul_u32_u24 v{T[2]}, 192, v{T[2]}")
    A(f"v_bfe_u32 v{T[3]}, v1, 4, 1")
    A(f"v_lshl_add_u32 v{T[2]}, v{T[3]}, 5, v{T[2]}")
    A(f"v_and_b32 v{T[3]}, 3, v1")
    A(f"v_lshl_add_u32 v{T[2]}, v{T[3]}, 3, v{T[2]}")
    A(f"v_add_u32 v{vWR[0]}, s{sOH}, v{T[2]}")
    A(f"v_add_u32 v{vWR[1]}, {320*192}, v{vWR[0]}")
    A(f"v_cmp_eq_u32 s[{sM1}:{sM1+1}], 1, v{T[3]}")
    A(f"v_cmp_eq_u32 s[{sM2}:{sM2+1}], 2, v{T[3]}")
    A(f"v_cmp_eq_u32 s[{sM3}:{sM3+1}], 3, v{T[3]}")
    for r in range(96, 116): A(f"v_mov_b32 v{r}, 0")
    A(f"v_mov_b32 v{ONES}, 0x3f803f80")
    A(f"v_mov_b32 v{ONES+1}, 0x3f803f80")
    for f in dma_w_list(2): f()
    for f in dma_x_list(2): f()
    for f in dma_w_list(3): f()
    def wfrag(kb, seg, s): return (kb & 1) * 48 + (seg*4 + s) * 4
    def w_reads(kb):
        out = []
        for seg in (1, 0, 2):
            for s in range(4):
                for u2 in range(2):
                    base = 0 if kb < 5 else 1
                    off = (64*kb + 16*s + 4*u2 - (320 if base else 0)) * 192 + seg*64
                    out.append((f"ds_read_b64_tr_b16 a[{wfrag(kb,seg,s)+2*u2}:{wfrag(kb,seg,s)+2*u2+1}], v{vWR[base]} offset:{off}", f"wf{kb}_{seg}"))
        return out
    def x_reads(u):
        slot = u & 3
        return [(f"ds_read_b128 v[{XB[u&1]+4*s}:{XB[u&1]+4*s+3}], v{vXR[s]} offset:{slot*4096}", f"xf{u}") for s in range(4)]
    vPT = 129
    A(f"v_and_b32 v{T[2]}, 15, v1")
    A(f"s_lshl_b32 s{sT0}, s{sW}, 4")
    A(f"v_add_u32 v{T[2]}, s{sT0}, v{T[2]}")
    A(f"v_mul_u32_u24 v{T[2]}, 192, v{T[2]}")
    A(f"s_add_u32 s{sT0}, s{sOH}, {64+56}")
    A(f"v_add_u32 v{vPT}, s{sT0}, v{T[2]}")
    A(f"v_add_u32 v234, {5*64*192}, v{vPT}")
    def wpatch(kb):
        A.wait_vm(f"W{kb}")
        if kb < 5: A(f"ds_write_b16 v{vPT}, v{ONES} offset:{kb*64*192}", tag="pt")
        else: A(f"ds_write_b16 v234, v{ONES} offset:{(kb-5)*64*192}", tag="pt")
    stamp(A, 1)
    wpatch(0)
    A("s_waitcnt lgkmcnt(0)")
    A("s_barrier")
    for x in w_reads(0): do(A, x)
    A.wait_vm("X0")
    for x in x_reads(0): do(A, x)
    wpatch(1)
    PFD = 239; PFT = 235
    pf1 = l2_prefetch_list(A, sWO, D*D*2, PFT, PFD, sX4) + l2_prefetch_list(A, sW1, D*F*2, PFT, PFD, sX4)
    G4, RR, C = 231, 232, 233
    lane_tr_common(A, G4, RR, C)
    for kb in range(7):
        xb = XB[kb & 1]
        stamp(A, 2 + kb)
        A("s_waitcnt lgkmcnt(0)")
        def mf(s):
            xf = f4(xb + 4*s)
            wq, wk, wv = [f"a[{wfrag(kb,seg,s)}:{wfrag(kb,seg,s)+3}]" for seg in range(3)]
            first = (kb == 0 and s == 0)
            return [f"{MF} {f16(ak)}, {wk}, {xf}, {'0' if first else f16(ak)}",
                    f"{MF} {f16(aq)}, {wq}, {xf}, {'0' if first else f16(aq)}",
                    f"{MF} {f16(av)}, {xf}, {wv}, {'0' if first else f16(av)}"]
        def small():
            for s in range(4):
                for hf in range(2):
                    A(f"{MS} {f4(SQ[hf])}, v[{xb+4*s+2*hf}:{xb+4*s+2*hf+1}], v[{xb+4*s+2*hf}:{xb+4*s+2*hf+1}], {f4(SQ[hf])}")
            for s in range(4):
                lab = A.newlabel("Lcs")
                A(f"s_cmp_lg_u32 s{sW}, {s}")
                A(f"s_cbranch_scc1 {lab}")
                for half in range(2):
                    for seg in range(3):
                        w0 = wfrag(kb, seg, s) + 2*half
                        A(f"{MS} {f4(CS[seg])}, a[{w0}:{w0+1}], v[{ONES}:{ONES+1}], {f4(CS[seg])}")
                A.label(lab)
        main = mf(0) + mf(1) + [small] + mf(2) + mf(3)
        fill = []
        if kb + 1 <= 6:
            fill.append("s_barrier")
            fill += w_reads(kb + 1)[:12]
            fill.append(lambda kb=kb: A.wait_vm(f"X{kb+1}"))
            fill += x_reads(kb + 1)
            fill += w_reads(kb + 1)[12:]
            if kb + 2 <= 6: fill.append(lambda kb=kb: wpatch(kb + 2))
        dm = []
        if kb + 3 <= 6: dm = dma_x_list(kb + 3)
        if kb + 4 <= 6: dm = dma_w_list(kb + 4) + dm
        if kb == 3: dm = dm + pf1
        if kb == 2 and OPT.get('tlb', True): dm = dm + tlb_list()
        fill = merge_even(dm, fill)
        interleave(A, main, fill)
        if kb == 5:
            lw2 = A.newlabel("Lw2s")
            A(f"s_cmp_eq_u32 s{sW2ON}, 0"); A(f"s_cbranch_scc1 {lw2}")
            WT = 172
            A(f"v_lshl_add_u32 v{T[8]}, v{G4}, 2, v{RR}")
            A(f"v_mul_u32_u24 v{T[8]}, 224, v{T[8]}")
            A(f"v_lshl_add_u32 v{T[8]}, v{C}, 3, v{T[8]}")
            A(f"v_add_u32 v{T[8]}, {W2T_LDS}, v{T[8]}")
            for i in range(7):
                for u in range(2):
                    A(f"ds_read_b64_tr_b16 v[{WT+4*i+2*u}:{WT+4*i+2*u+1}], v{T[8]} offset:{16*u*224 + 32*i}")
            A(f"s_mul_i32 s{sT0}, s{sW2K}, 28")
            A(f"s_mul_i32 s{sT1}, s{sW2Q}, 7")
            A(f"s_add_u32 s{sT0}, s{sT0}, s{sT1}")
            A(f"s_lshl_b32 s{sT0}, s{sT0}, 10")
            A(f"s_add_u32 s{sT0}, s{sT0}, {WS_W2T}")
            A(f"v_lshlrev_b32 v{T[9]}, 4, v1")
            A("s_waitcnt lgkmcnt(0)")
            for i in range(7):
                A(f"s_add_u32 s{sT1}, s{sT0}, {(i*1024) & ~4095}")
                A(f"buffer_store_dwordx4 {f4(WT+4*i)}, v{T[9]}, s[{sWS}:{sWS+3}], s{sT1} offen offset:{(i*1024) & 4095} sc1")
                A.vm.pop(); A.vmregs.pop()
            A.label(lw2)
    stamp(A, 9)
    def sel4(dst, base):
        A(f"v_cndmask_b32 v{dst}, v{base}, v{base+1}, s[{sM1}:{sM1+1}]")
        A(f"v_cndmask_b32 v{dst}, v{dst}, v{base+2}, s[{sM2}:{sM2+1}]")
        A(f"v_cndmask_b32 v{dst}, v{dst}, v{base+3}, s[{sM3}:{sM3+1}]")
    A(f"v_and_b32 v{T[0]}, 31, v1")
    A(f"v_lshrrev_b32 v{T[1]}, 5, v1")
    A(f"v_lshlrev_b32 v{T[2]}, 5, v{T[0]}")
    A(f"v_add_u32 v{T[2]}, {CS_BASE}, v{T[2]}")
    A(f"s_lshl_b32 s{sT0}, s{sW}, 3")
    A(f"v_lshl_add_u32 v{T[3]}, v{T[1]}, 2, v{T[2]}")
    A(f"v_add_u32 v{T[3]}, s{sT0}, v{T[3]}")
    for seg in range(3):
        sel4(T[4+seg], CS[seg])
        A(f"ds_write_b32 v{T[3]}, v{T[4+seg]} offset:{seg*1024}")
    MEAN, RSTD, XC = T[8], T[9], T[10]
    for j in range(4): A(f"v_add_f32 v{SQ[0]+j}, v{SQ[0]+j}, v{SQ[1]+j}")
    sel4(T[4], SQ[0])
    A(f"v_mov_b32 v{T[5]}, v{T[4]}")
    A(f"v_mov_b32 v{T[6]}, v{ak+12}")
    A(f"v_mov_b32 v{T[7]}, v{ak+12}")
    A(f"v_permlane32_swap_b32 v{T[4]}, v{T[5]}")
    A(f"v_permlane32_swap_b32 v{T[6]}, v{T[7]}")
    A(f"v_add_f32 v{T[4]}, v{T[4]}, v{T[5]}")
    A(f"v_mul_f32 v{MEAN}, {f32bits(1.0/448):#x}, v{T[7]}")
    A(f"v_mul_f32 v{T[4]}, {f32bits(1.0/448):#x}, v{T[4]}")
    A(f"v_fma_f32 v{T[4]}, -v{MEAN}, v{MEAN}, v{T[4]}")
    A(f"v_max_f32 v{T[4]}, 0, v{T[4]}")
    A(f"v_add_f32 v{T[4]}, {f32bits(1e-5):#x}, v{T[4]}")
    A(f"v_rsq_f32 v{RSTD}, v{T[4]}")
    A(f"s_lshl_b32 s{sT0}, s{sW}, 7")
    A(f"s_add_u32 s{sT0}, s{sT0}, {RS_BASE}")
    A(f"v_lshlrev_b32 v{T[6]}, 2, v{T[0]}")
    A(f"v_add_u32 v{T[6]}, s{sT0}, v{T[6]}")
    A(f"ds_write_b32 v{T[6]}, v{RSTD}")
    A(f"v_sub_f32 v{T[4]}, 0, v{MEAN}")
    A(f"v_cvt_pk_bf16_f32 v{T[5]}, v{T[4]}, v{T[4]}")
    A(f"v_lshlrev_b32 v{T[5]}, 16, v{T[5]}")
    A(f"v_sub_f32 v{T[5]}, v{T[4]}, v{T[5]}")
    A(f"v_cvt_pk_bf16_f32 v{XC}, v{T[4]}, v{T[5]}")
    A(f"v_cndmask_b32 v{XC}, v{XC}, 0, s[{sHI}:{sHI+1}]")
    A(f"v_lshlrev_b32 v{T[5]}, 4, v{T[1]}")
    A(f"v_add_u32 v{T[5]}, s{sT0}, v{T[5]}")
    XCF = 108
    A("s_waitcnt lgkmcnt(0)")
    A("s_barrier")
    CB = 64
    for seg in (1, 2, 0):
        A(f"ds_read_b128 {f4(CB+8*seg)}, v{T[2]} offset:{seg*1024}")
        A(f"ds_read_b128 {f4(CB+8*seg+4)}, v{T[2]} offset:{seg*1024+16}")
    RB = 172
    for q in range(4):
        A(f"ds_read_b128 {f4(RB+4*q)}, v{T[5]} offset:{q*32}")
    vDW = 236; KVW = 237; vL = 238
    dma128_voff(A, vDW, T[11], T[12], T[13], sCOL)
    A(f"s_lshl_b32 s{sT0}, s{sW}, 12")
    A(f"s_add_u32 s{sT0}, s{sT0}, {KV_BASE}")
    A(f"v_lshlrev_b32 v{vL}, 4, v1")
    A(f"v_add_u32 v{KVW}, s{sT0}, v{vL}")
    A(f"s_lshl_b32 s{sKV}, s{sL}, 14")
    A(f"s_add_u32 s{sKV}, s{sKV}, {WS_KV}")
    A(f"s_lshl_b32 s{sT3}, s{sW}, 12")
    A(f"s_add_u32 s{sT3}, s{sT3}, s{sKV}")
    A(f"v_mov_b32 v{XCF}, v{XC}")
    A(f"v_mov_b32 v{XCF+1}, v{XC}")
    A(f"v_mov_b32 v{XCF+2}, 0")
    A(f"v_mov_b32 v{XCF+3}, 0")
    WC = [96, 100, 104]
    A("s_waitcnt lgkmcnt(0)")
    accs = [aq, ak, av]
    for seg in (1, 2, 0):
        b = CB + 8*seg
        for k in (1, 2, 4):
            for j in range(0, 8, 2*k):
                A(f"v_add_f32 v{b+j}, v{b+j}, v{b+j+k}")
        A(f"v_cvt_pk_bf16_f32 v{WC[seg]}, v{b}, v{b}")
        A(f"v_lshlrev_b32 v{b+1}, 16, v{WC[seg]}")
        A(f"v_sub_f32 v{b+1}, v{b}, v{b+1}")
        A(f"v_cvt_pk_bf16_f32 v{WC[seg]+1}, v{b+1}, v{b+1}")
        A(f"v_mov_b32 v{WC[seg]+2}, 0")
        A(f"v_mov_b32 v{WC[seg]+3}, 0")
        if seg == 2: A(f"{MF} {f16(av)}, {f4(XCF)}, {f4(WC[2])}, {f16(av)}")
        else: A(f"{MF} {f16(accs[seg])}, {f4(WC[seg])}, {f4(XCF)}, {f16(accs[seg])}")
    PK = 64; PV = 72
    A(f"v_cmp_eq_u32 s[{sM1}:{sM1+1}], 28, v{T[0]}")
    A(f"v_mov_b32 v{T[6]}, 0x3f803f80")
    for r in range(16): A(f"v_mul_f32 v{ak+r}, v{ak+r}, v{RSTD}")
    for j in range(8): A(f"v_cvt_pk_bf16_f32 v{PK+j}, v{ak+2*j}, v{ak+2*j+1}")
    for j in (6, 7): A(f"v_cndmask_b32 v{PK+j}, v{PK+j}, 0, s[{sHI}:{sHI+1}]")
    A(f"buffer_store_dwordx4 {f4(PK)}, v{vL}, s[{sWS}:{sWS+3}], s{sT3} offen sc1", tag="kvst")
    A(f"buffer_store_dwordx4 {f4(PK+4)}, v{vL}, s[{sWS}:{sWS+3}], s{sT3} offen offset:1024 sc1", tag="kvst")
    for r in range(16): A(f"v_mul_f32 v{av+r}, v{av+r}, v{RB+r}")
    for j in range(8): A(f"v_cvt_pk_bf16_f32 v{PV+j}, v{av+2*j}, v{av+2*j+1}")
    for j in range(8): A(f"v_cndmask_b32 v{PV+j}, v{PV+j}, v{T[6]}, s[{sM1}:{sM1+1}]")
    A(f"buffer_store_dwordx4 {f4(PV)}, v{vL}, s[{sWS}:{sWS+3}], s{sT3} offen offset:2048 sc1", tag="kvst")
    A(f"buffer_store_dwordx4 {f4(PV+4)}, v{vL}, s[{sWS}:{sWS+3}], s{sT3} offen offset:3072 sc1", tag="kvst")
    A(f"ds_write_b128 v{KVW}, {f4(PK)} offset:{8*4096}")
    A(f"ds_write_b128 v{KVW}, {f4(PK+4)} offset:{8*4096+1024}")
    A(f"ds_write_b128 v{KVW}, {f4(PV)} offset:{8*4096+2048}")
    A(f"ds_write_b128 v{KVW}, {f4(PV+4)} offset:{8*4096+3072}")
    c = (DH ** -0.5) * math.log2(math.e)
    A(f"v_mul_f32 v{T[4]}, {f32bits(c):#x}, v{RSTD}")
    for r in range(16): A(f"v_mul_f32 v{aq+r}, v{aq+r}, v{T[4]}")
    for j in range(8): A(f"v_cvt_pk_bf16_f32 v{QF+j}, v{aq+2*j}, v{aq+2*j+1}")
    for j in (6, 7): A(f"v_cndmask_b32 v{QF+j}, v{QF+j}, 0, s[{sHI}:{sHI+1}]")
    vO = vRJ
    for p in range(7):
        A(f"v_and_b32 v{T[3]}, 0xff, v{vRJ[p]}")
        A(f"v_lshrrev_b32 v{T[4]}, 8, v{vRJ[p]}")
        A(f"v_mul_u32_u24 v{T[3]}, 3584, v{T[3]}")
        A(f"v_lshl_add_u32 v{vO[p]}, v{T[4]}, 4, v{T[3]}")
    stamp(A, 10)
    epoch_fetch(A)
    def fa():
        A(f"s_lshl_b32 s{sT0}, s{sL}, 5")
        A(f"s_lshl_b32 s{sT1}, s{sW}, 3")
        A(f"s_add_u32 s{sT0}, s{sT0}, s{sT1}")
        A(f"s_add_u32 s{sT0}, s{sT0}, {FL_A}")
    flag_store(A, fa)
    lw3 = A.newlabel("Lw2f")
    A(f"s_cmp_eq_u32 s{sW2ON}, 0"); A(f"s_cbranch_scc1 {lw3}")
    def fw():
        A(f"s_lshl_b32 s{sT0}, s{sL}, 3")
        A(f"s_add_u32 s{sT0}, s{sT0}, {FL_W}")
    flag_store(A, fw)
    A.label(lw3)
    def wo_dma(k):
        if k < 14:
            A(f"s_mul_i32 s{sT1}, s{sW}, 7168")
            A(f"s_lshl_b32 s{sT2}, s{sW}, 10")
            A(f"s_add_u32 s{sT0}, s{sT1}, {k*4*7168}")
            A(f"s_add_u32 m0, s{sT2}, {WO_BASE + k*4096}")
        else:
            A(f"s_mov_b32 s{sT0}, {56*7168}")
            A(f"s_mov_b32 m0, {WO_BASE + 56*1024}")
        A(f"buffer_load_dwordx4 v{vDW}, s[{sWO}:{sWO+3}], s{sT0} offen lds", tag="wo")
    for k in range(15): wo_dma(k)
    def w1_group(Gbase, cond):
        lab = None
        if cond:
            lab = A.newlabel("Lw1")
            A(f"s_cmp_eq_u32 s{sW}, 0"); A(f"s_cbranch_scc1 {lab}")
        A(f"s_sub_u32 s{sT3}, {Gbase}, s{sW}")
        A(f"s_mul_i32 s{sT0}, s{sT3}, {32*3584}")
        A(f"s_mul_i32 s{sT1}, s{sR}, 224")
        A(f"s_add_u32 s{sT0}, s{sT0}, s{sT1}")
        A(f"s_mul_i32 s{sT2}, s{sT3}, 7168")
        for p in range(7):
            A(f"s_add_u32 m0, s{sT2}, {W1_BASE + p*1024}")
            A(f"buffer_load_dwordx4 v{vO[p]}, s[{sW1}:{sW1+3}], s{sT0} offen lds", tag="w1")
        if lab: A.label(lab)
    w1_group(3, False)
    w1_group(7, True)
    A.vm = []
    la = A.newlabel("LnoA")
    A(f"s_cmp_eq_u32 s{sG}, 0"); A(f"s_cbranch_scc1 {la}")
    def addrA():
        A(f"s_lshl_b32 s{sT0}, s{sL}, 5")
        A(f"s_lshl_b32 s{sT1}, s{sW}, 3")
        A(f"s_add_u32 s{sT0}, s{sT0}, s{sT1}")
        A(f"s_add_u32 s{sT0}, s{sT0}, {FL_A - 16*32}")
        A(f"s_min_u32 s{sT1}, s{sG}, 2")
        A(f"s_sub_u32 s{sT1}, s{sT1}, 1")
        A(f"v_min_u32 v4, s{sT1}, v1")
        A(f"v_mul_u32_u24 v4, {16*32}, v4")
        A(f"v_sub_u32 v4, s{sT0}, v4")
    poll(A, 2, addrA)
    A.label(la)
    stamp(A, 11)
    A(f"s_lshl_b32 s{sT0}, s{sW}, 12")
    A(f"s_add_u32 s{sT0}, s{sT0}, s{sKV}")
    HB = 16
    for jj, back in ((0, 2), (1, 1)):
        A(f"s_sub_u32 s{sT1}, s{sT0}, {back*16*16384}")
        A(f"s_cmp_lt_u32 s{sG}, {back}")
        A(f"s_cselect_b32 s{sT1}, 0x7ffff000, s{sT1}")
        for i in range(4):
            A(f"buffer_load_dwordx4 {f4(HB+16*jj+4*i)}, v{vL}, s[{sWS}:{sWS+3}], s{sT1} offen offset:{i*1024} sc1", tag=f"halo{jj}")
    SB = 16; KF = [160, 168]; VF = [176, 184]; OA = 192
    TT = list(range(208, 224))
    KVR = KVW
    NEG = TT[0]; QQ = TT[1]; MX = TT[2]; MX2 = TT[3]
    A(f"v_mov_b32 v{NEG}, {f32bits(-1e30):#x}")
    A(f"v_and_b32 v{QQ}, 31, v1")
    A(f"v_lshrrev_b32 v{MX}, 5, v1")
    A(f"v_lshlrev_b32 v{MX}, 2, v{MX}")
    A(f"v_sub_u32 v{QQ}, v{QQ}, v{MX}")
    for jj in range(2):
        A.wait_vm(f"halo{jj}")
        for i in range(4):
            A(f"ds_write_b128 v{KVW}, {f4(HB+16*jj+4*i)} offset:{jj*4*4096 + i*1024}")
    def addrW():
        A(f"s_mul_i32 s{sT0}, s{sW}, {56*8}")
        A(f"s_add_u32 s{sT0}, s{sT0}, {FL_W}")
        A(f"v_lshl_add_u32 v4, v1, 3, s{sT0}")
    poll(A, 56, addrW)
    A("s_waitcnt lgkmcnt(0)")
    A("s_barrier")
    stamp(A, 12)
    sW2B = 13
    A(f"s_mul_i32 s{sW2B}, s{sW}, {14*28*1024}")
    A(f"s_lshl_b32 s{sT0}, s{sCS}, 12")
    A(f"s_add_u32 s{sW2B}, s{sW2B}, s{sT0}")
    A(f"s_add_u32 s{sW2B}, s{sW2B}, {WS_W2T}")
    w2l = []
    for ks in range(14):
        for i in range(4):
            def f(ks=ks, i=i):
                if i == 0: A(f"s_add_u32 s{sT3}, s{sW2B}, {ks*28*1024}")
                a = (ks*4+i)*4
                A(f"buffer_load_dwordx4 a[{a}:{a+3}], v{vL}, s[{sWS}:{sWS+3}], s{sT3} offen offset:{i*1024} sc1", tag="w2t")
            w2l.append(f)
    def kread(i): return [(f"ds_read_b128 {f4(KF[i&1])}, v{KVR} offset:{i*4096}", f"k{i}"),
                          (f"ds_read_b128 {f4(KF[i&1]+4)}, v{KVR} offset:{i*4096+1024}", f"k{i}")]
    for x in kread(0): do(A, x)
    for i in range(9):
        if i + 1 < 9:
            for x in kread(i+1): do(A, x)
        A.wait_lg(f"k{i}")
        sb = SB + 16*i
        A(f"{MF} {f16(sb)}, {f4(KF[i&1])}, {f4(QF)}, 0")
        A(f"{MF} {f16(sb)}, {f4(KF[i&1]+4)}, {f4(QF+4)}, {f16(sb)}")
        w2l.pop(0)()
    for r in range(16):
        rc = (r & 3) + 8 * (r >> 2)
        sp = 14 + 2 * (r & 3)
        A(f"v_cmp_ge_i32 s[{sp}:{sp+1}], v{QQ}, {rc}")
        if (r & 3) == 3:
            for rr in range(r - 3, r + 1):
                sp2 = 14 + 2 * (rr & 3)
                A(f"v_cndmask_b32 v{SB+16*8+rr}, v{NEG}, v{SB+16*8+rr}, s[{sp2}:{sp2+1}]")
                A(f"v_cndmask_b32 v{SB+rr}, v{SB+rr}, v{NEG}, s[{sp2}:{sp2+1}]")
            w2l.pop(0)()
    A(f"s_lshl_b32 s{sT0}, s{sG}, 2")
    A(f"s_add_u32 s{sT0}, s{sT0}, s{sW}")
    skip_all = A.newlabel("Lval")
    A(f"s_cmp_ge_u32 s{sT0}, 8")
    A(f"s_cbranch_scc1 {skip_all}")
    for i in range(8):
        lab = A.newlabel("Linv")
        A(f"s_cmp_ge_u32 s{sT0}, {8 - i}")
        A(f"s_cbranch_scc1 {lab}")
        for r in range(16): A(f"v_mov_b32 v{SB+16*i+r}, v{NEG}")
        A.label(lab)
    A.label(skip_all)
    A(f"v_max_f32 v{MX}, v{SB}, v{SB+1}")
    A(f"v_max_f32 v{MX2}, v{SB+2}, v{SB+3}")
    for k in range(4, 144, 4):
        A(f"v_max3_f32 v{MX}, v{MX}, v{SB+k}, v{SB+k+1}")
        A(f"v_max3_f32 v{MX2}, v{MX2}, v{SB+k+2}, v{SB+k+3}")
        if (k // 4) % 5 == 0: w2l.pop(0)()
    A(f"v_max_f32 v{MX}, v{MX}, v{MX2}")
    A(f"v_mov_b32 v{MX2}, v{MX}")
    A(f"v_permlane32_swap_b32 v{MX}, v{MX2}")
    A(f"v_max_f32 v{MX}, v{MX}, v{MX2}")
    stamp(A, 13)
    def vread(i): return [(f"ds_read_b128 {f4(VF[i&1])}, v{KVR} offset:{i*4096+2048}", f"v{i}"),
                          (f"ds_read_b128 {f4(VF[i&1]+4)}, v{KVR} offset:{i*4096+3072}", f"v{i}")]
    for x in vread(0): do(A, x)
    for i in range(9):
        sb = SB + 16*i
        if i + 1 < 9:
            for x in vread(i+1): do(A, x)
        for r in range(16):
            A(f"v_sub_f32 v{sb+r}, v{sb+r}, v{MX}")
            A(f"v_exp_f32 v{sb+r}, v{sb+r}")
            if r % 4 == 3 and w2l: w2l.pop(0)()
        for j in range(8): A(f"v_cvt_pk_bf16_f32 v{sb+j}, v{sb+2*j}, v{sb+2*j+1}")
        A.wait_lg(f"v{i}")
        cc = "0" if i == 0 else f16(OA)
        A(f"{MF} {f16(OA)}, {f4(VF[i&1])}, {f4(sb)}, {cc}")
        A(f"{MF} {f16(OA)}, {f4(VF[i&1]+4)}, {f4(sb+4)}, {f16(OA)}")
    while w2l: w2l.pop(0)()
    L1, L2 = TT[4], TT[5]
    A(f"s_lshl_b32 s{sT0}, s{sG}, 3")
    A(f"s_lshl_b32 s{sT1}, s{sW}, 1")
    A(f"s_add_u32 s{sT0}, s{sT0}, s{sT1}")
    A(f"s_lshl_b32 s{sT0}, s{sT0}, 4")
    A(f"s_add_u32 s{sT0}, s{sT0}, s{sR}")
    A(f"s_lshl_b32 s{sT0}, s{sT0}, 10")
    A(f"s_add_u32 s{sT3}, s{sT0}, {WS_O}")
    A(f"v_bfe_u32 v{TT[6]}, v1, 4, 1")
    A(f"v_lshlrev_b32 v{TT[6]}, 14, v{TT[6]}")
    A(f"v_and_b32 v{L2}, 15, v1")
    A(f"v_lshl_add_u32 v{TT[6]}, v{L2}, 4, v{TT[6]}")
    A(f"v_lshrrev_b32 v{L2}, 5, v1")
    A(f"v_lshl_add_u32 v{TT[6]}, v{L2}, 8, v{TT[6]}")
    A(f"v_mov_b32 v{L1}, v{OA+12}")
    A(f"v_mov_b32 v{L2}, v{OA+12}")
    A(f"v_permlane32_swap_b32 v{L1}, v{L2}")
    A(f"v_rcp_f32 v{L2}, v{L2}")
    for r in range(16): A(f"v_mul_f32 v{OA+r}, v{OA+r}, v{L2}")
    for j in range(8): A(f"v_cvt_pk_bf16_f32 v{OA+j}, v{OA+2*j}, v{OA+2*j+1}")
    for j in (6, 7): A(f"v_cndmask_b32 v{OA+j}, v{OA+j}, 0, s[{sHI}:{sHI+1}]")
    A(f"buffer_store_dwordx4 {f4(OA)}, v{TT[6]}, s[{sWS}:{sWS+3}], s{sT3} offen sc1", tag="ost")
    A(f"buffer_store_dwordx4 {f4(OA+4)}, v{TT[6]}, s[{sWS}:{sWS+3}], s{sT3} offen offset:512 sc1", tag="ost")
    stamp(A, 14)
    A("s_barrier")
    w1_group(10, False)
    A.wait_vm("ost")
    def fb():
        A(f"s_lshl_b32 s{sT0}, s{sG}, 9")
        A(f"s_lshl_b32 s{sT1}, s{sW}, 7")
        A(f"s_add_u32 s{sT0}, s{sT0}, s{sT1}")
        A(f"s_lshl_b32 s{sT1}, s{sR}, 3")
        A(f"s_add_u32 s{sT0}, s{sT0}, s{sT1}")
        A(f"s_add_u32 s{sT0}, s{sT0}, {FL_B}")
    flag_store(A, fb)
    w1_group(14, True)
    A.vm = []
    T = list(range(5, 19))
    sTT = 76
    A(f"s_lshl_b32 s{sTT}, s{sG}, 3")
    A(f"s_lshl_b32 s{sT0}, s{sTH}, 2")
    A(f"s_add_u32 s{sTT}, s{sTT}, s{sT0}")
    A(f"s_add_u32 s{sTT}, s{sTT}, s{sW}")
    vA = [24, 25, 26, 27]
    OF = 32; ACC2 = 96; WF = 112; XR = 144
    A(f"v_and_b32 v{T[6]}, 15, v1")
    A(f"s_lshl_b32 s{sT0}, s{sTT}, 4")
    A(f"v_add_u32 v{T[6]}, s{sT0}, v{T[6]}")
    A(f"v_mul_u32_u24 v{T[7]}, 896, v{T[6]}")
    A(f"v_lshl_add_u32 v{T[7]}, v{G4}, 3, v{T[7]}")
    for i in range(4):
        A(f"buffer_load_dwordx2 v[{XR+2*i}:{XR+2*i+1}], v{T[7]}, s[{sX}:{sX+3}], s{sCOL} offen offset:{32*i}", tag="xr")
    A(f"v_lshrrev_b32 v{T[8]}, 1, v{G4}")
    A(f"v_lshlrev_b32 v{T[8]}, 4, v{T[8]}")
    A(f"v_and_b32 v{T[9]}, 1, v{G4}")
    A(f"v_lshl_add_u32 v{T[8]}, v{T[9]}, 2, v{T[8]}")
    A(f"v_add_u32 v{T[8]}, v{T[8]}, v{RR}")
    A(f"v_lshlrev_b32 v{T[8]}, 7, v{T[8]}")
    A(f"v_lshl_add_u32 v{T[8]}, v{C}, 3, v{T[8]}")
    A(f"v_lshrrev_b32 v{T[10]}, 1, v{RR}")
    A(f"v_lshl_add_u32 v{T[9]}, v{T[9]}, 1, v{T[10]}")
    for i in range(4):
        A(f"v_xor_b32 v{T[10]}, {i}, v{T[9]}")
        A(f"v_lshl_add_u32 v{vA[i]}, v{T[10]}, 5, v{T[8]}")
    vA3 = [22, 23]
    ONES = 20
    A(f"v_lshl_add_u32 v{T[8]}, v{G4}, 2, v{RR}")
    A(f"v_mul_u32_u24 v{T[8]}, 224, v{T[8]}")
    A(f"v_lshl_add_u32 v{vA3[0]}, v{C}, 3, v{T[8]}")
    A(f"v_add_u32 v{vA3[0]}, {W1_BASE}, v{vA3[0]}")
    A(f"v_add_u32 v{vA3[1]}, {8*32*224}, v{vA3[0]}")
    A(f"v_mov_b32 v{ONES}, 0x3f803f80")
    A(f"v_mov_b32 v{ONES+1}, 0x3f803f80")
    CS3 = 192; CW = 160
    for r in range(CS3, CS3+28): A(f"v_mov_b32 v{r}, 0")
    def colsum_group(Gbase, cond):
        lab = None
        if cond:
            lab = A.newlabel("Lc3")
            A(f"s_cmp_eq_u32 s{sW}, 0"); A(f"s_cbranch_scc1 {lab}")
        A(f"s_sub_u32 s{sT3}, {Gbase}, s{sW}")
        A(f"s_mul_i32 s{sT3}, s{sT3}, {32*224}")
        A(f"v_add_u32 v{T[11]}, s{sT3}, v{vA3[0]}")
        for i in range(7):
            for u in range(2):
                A(f"ds_read_b64_tr_b16 v[{CW+4*i+2*u}:{CW+4*i+2*u+1}], v{T[11]} offset:{16*u*224 + 32*i}")
        A("s_waitcnt lgkmcnt(0)")
        for u in range(2):
            for i in range(7):
                A(f"{MS} {f4(CS3+4*i)}, v[{CW+4*i+2*u}:{CW+4*i+2*u+1}], v[{ONES}:{ONES+1}], {f4(CS3+4*i)}")
        if lab: A.label(lab)
        A.lg = []; A.lgregs = []
    colsum_group(3, False)
    colsum_group(7, True)
    BR = 240
    A(f"v_lshlrev_b32 v{T[7]}, 3, v{G4}")
    A(f"s_mul_i32 s{sT1}, s{sR}, 224")
    for i in range(7):
        A(f"buffer_load_dwordx2 v[{BR+2*i}:{BR+2*i+1}], v{T[7]}, s[{sB1}:{sB1+3}], s{sT1} offen offset:{32*i}", tag="b1")
    stamp(A, 15)
    p2done = A.newlabel("Lp2done")
    A(f"s_cmp_ge_u32 s{sR}, 14")
    A(f"s_cbranch_scc1 {p2done}")
    def addrB():
        A(f"s_lshr_b32 s{sT0}, s{sTT}, 1")
        A(f"s_lshl_b32 s{sT0}, s{sT0}, 7")
        A(f"s_add_u32 s{sT0}, s{sT0}, {FL_B}")
        A(f"v_lshl_add_u32 v4, v1, 3, s{sT0}")
    poll(A, 16, addrB)
    stamp(A, 16)
    sOB = 77
    A(f"s_lshl_b32 s{sOB}, s{sTT}, 14")
    A(f"s_add_u32 s{sOB}, s{sOB}, {WS_O}")
    def oload(hd):
        A(f"s_add_u32 s{sT0}, s{sOB}, {(hd//4)*4096}")
        A(f"buffer_load_dwordx4 {f4(OF+4*hd)}, v{vL}, s[{sWS}:{sWS+3}], s{sT0} offen offset:{(hd%4)*1024} sc1", tag=f"o{hd}")
    def wreads(hd):
        out = []
        for i in range(4):
            for u in range(2):
                b = WF + (hd & 1)*16 + 4*i + 2*u
                out.append((f"ds_read_b64_tr_b16 v[{b}:{b+1}], v{vA[i ^ (2*(hd&1))]} offset:{WO_BASE + (28*hd + 8*u)*128}", f"w{hd}"))
        return out
    NPRE = 8
    for hd in range(NPRE): oload(hd)
    for x in wreads(0): do(A, x)
    for hd in range(16):
        if hd + NPRE < 16: oload(hd + NPRE)
        if hd + 1 < 16:
            for x in wreads(hd+1): do(A, x)
        A.wait_lg(f"w{hd}")
        A.wait_vm(f"o{hd}")
        for i in range(4):
            b = WF + (hd & 1)*16 + 4*i
            cc = "0" if hd == 0 else f4(ACC2+4*i)
            A(f"{M16} {f4(ACC2+4*i)}, {f4(b)}, {f4(OF+4*hd)}, {cc}")
    SUM, SQv = T[11], T[12]
    XU = 152
    for i in range(4):
        for d in range(2):
            A(f"v_lshlrev_b32 v{XU}, 16, v{XR+2*i+d}")
            A(f"v_and_b32 v{XU+1}, 0xffff0000, v{XR+2*i+d}")
            A(f"v_add_f32 v{ACC2+4*i+2*d}, v{ACC2+4*i+2*d}, v{XU}")
            A(f"v_add_f32 v{ACC2+4*i+2*d+1}, v{ACC2+4*i+2*d+1}, v{XU+1}")
    HP = 156
    for j in range(8): A(f"v_cvt_pk_bf16_f32 v{HP+j}, v{ACC2+2*j}, v{ACC2+2*j+1}")
    A(f"s_mul_i32 s{sT0}, s{sTT}, 14")
    A(f"s_lshl_b32 s{sT1}, s{sCS}, 1")
    A(f"s_add_u32 s{sT0}, s{sT0}, s{sT1}")
    A(f"s_lshl_b32 s{sT0}, s{sT0}, 10")
    A(f"s_add_u32 s{sT0}, s{sT0}, {WS_H}")
    A(f"buffer_store_dwordx4 {f4(HP)}, v{vL}, s[{sWS}:{sWS+3}], s{sT0} offen sc1")
    A(f"buffer_store_dwordx4 {f4(HP+4)}, v{vL}, s[{sWS}:{sWS+3}], s{sT0} offen offset:1024 sc1")
    A(f"v_mov_b32 v{SUM}, v{ACC2}")
    A(f"v_mul_f32 v{SQv}, v{ACC2}, v{ACC2}")
    for r in range(1, 16):
        A(f"v_add_f32 v{SUM}, v{SUM}, v{ACC2+r}")
        A(f"v_fmac_f32 v{SQv}, v{ACC2+r}, v{ACC2+r}")
    for v in (SUM, SQv):
        for sw in ("v_permlane32_swap_b32", "v_permlane16_swap_b32"):
            A(f"v_mov_b32 v{XU}, v{v}")
            A(f"{sw} v{v}, v{XU}")
            A(f"v_add_f32 v{v}, v{v}, v{XU}")
    A(f"v_mov_b32 v{XU}, v{SUM}")
    A(f"v_mov_b32 v{XU+1}, v{SQv}")
    A(f"s_lshl_b32 s{sT0}, s{sCS}, 3")
    A(f"s_add_u32 s{sT0}, s{sT0}, {WS_ST}")
    A(f"v_lshlrev_b32 v{T[6]}, 6, v{T[6]}")
    A("s_mov_b64 exec, 0xffff")
    A(f"buffer_store_dwordx2 v[{XU}:{XU+1}], v{T[6]}, s[{sWS}:{sWS+3}], s{sT0} offen sc1")
    A("s_mov_b64 exec, -1")
    A("s_waitcnt vmcnt(0)")
    def fc():
        A(f"s_lshl_b32 s{sT0}, s{sTT}, 6")
        A(f"s_lshl_b32 s{sT1}, s{sCS}, 3")
        A(f"s_add_u32 s{sT0}, s{sT0}, s{sT1}")
        A(f"s_add_u32 s{sT0}, s{sT0}, {FL_C}")
    flag_store(A, fc)
    jn = A.newlabel("Lp2j")
    A(f"s_branch {jn}")
    A.label(p2done)
    A("s_waitcnt vmcnt(0)")
    A.label(jn)
    A.vm = []; A.vmregs = []
    A("s_barrier")
    stamp(A, 17)
    HF = 32; ACC3 = 144; WF3 = 200
    sTT3 = 77
    A(f"s_lshl_b32 s{sTT3}, s{sG}, 3")
    A(f"s_lshl_b32 s{sT0}, s{sW}, 1")
    A(f"s_add_u32 s{sTT3}, s{sTT3}, s{sT0}")
    colsum_group(10, False)
    colsum_group(14, True)
    A(f"v_cmp_eq_u32 s[80:81], 1, v{C}")
    A(f"v_cmp_eq_u32 s[82:83], 2, v{C}")
    A(f"v_cmp_eq_u32 s[84:85], 3, v{C}")
    A(f"v_cmp_lt_u32 s[86:87], 15, v1")
    A(f"v_and_b32 v{T[0]}, 15, v1")
    A(f"v_lshlrev_b32 v{T[0]}, 4, v{T[0]}")
    A(f"v_add_u32 v{T[0]}, {W1CS_BASE}, v{T[0]}")
    A(f"s_lshl_b32 s{sT0}, s{sW}, 2")
    A(f"v_add_u32 v{T[1]}, s{sT0}, v{T[0]}")
    for i in range(7):
        b = CS3 + 4*i
        A(f"v_cndmask_b32 v{b}, v{b}, v{b+1}, s[80:81]")
        A(f"v_cndmask_b32 v{b}, v{b}, v{b+2}, s[82:83]")
        A(f"v_cndmask_b32 v{b}, v{b}, v{b+3}, s[84:85]")
        for sw in ("v_permlane32_swap_b32", "v_permlane16_swap_b32"):
            A(f"v_mov_b32 v{b+1}, v{b}")
            A(f"{sw} v{b}, v{b+1}")
            A(f"v_add_f32 v{b}, v{b}, v{b+1}")
        A(f"ds_write_b32 v{T[1]}, v{b} offset:{256*i}")
    BU = 224
    for i in range(7):
        for d in range(2):
            A(f"v_lshlrev_b32 v{T[13]}, 16, v{BR+2*i+d}")
            A(f"v_accvgpr_write_b32 a{BU+4*i+2*d}, v{T[13]}")
            A(f"v_and_b32 v{T[13]}, 0xffff0000, v{BR+2*i+d}")
            A(f"v_accvgpr_write_b32 a{BU+4*i+2*d+1}, v{T[13]}")
    A("s_waitcnt lgkmcnt(0)")
    A("s_barrier")
    CA = 240; CT = 144
    CA = 236 if False else 240
    for i in range(7):
        A(f"ds_read_b128 {f4(CT+4*i)}, v{T[0]} offset:{256*i}")
    A("s_waitcnt lgkmcnt(0)")
    CAr = [204 + 0]
    CA = 172
    CA = 240
    for i in range(7):
        b = CT + 4*i
        A(f"v_add_f32 v{b}, v{b}, v{b+1}")
        A(f"v_add_f32 v{b+2}, v{b+2}, v{b+3}")
        A(f"v_add_f32 v{b}, v{b}, v{b+2}")
        A(f"v_cvt_pk_bf16_f32 v{CA+2*i}, v{b}, v{b}")
        A(f"v_lshlrev_b32 v{b+2}, 16, v{CA+2*i}")
        A(f"v_sub_f32 v{b+2}, v{b}, v{b+2}")
        A(f"v_cvt_pk_bf16_f32 v{CA+2*i+1}, v{b+2}, v{b+2}")
    A(f"v_and_b32 v{T[6]}, 15, v1")
    A(f"s_lshl_b32 s{sT1}, s{sTT3}, 4")
    A(f"v_add_u32 v{T[6]}, s{sT1}, v{T[6]}")
    A(f"v_lshlrev_b32 v{T[6]}, 6, v{T[6]}")
    A(f"v_lshl_add_u32 v{T[6]}, v{G4}, 4, v{T[6]}")
    A(f"v_cmp_eq_u32 s[82:83], 3, v{G4}")
    sHBs = 80
    A(f"s_mul_i32 s{sHBs}, s{sTT3}, {14*1024}")
    A(f"s_add_u32 s{sHBs}, s{sHBs}, {WS_H}")
    stamp(A, 18)
    def addrC():
        A(f"s_lshl_b32 s{sT0}, s{sTT3}, 6")
        A(f"s_add_u32 s{sT0}, s{sT0}, {FL_C}")
        A(f"v_and_b32 v4, 7, v1")
        A(f"v_min_u32 v4, 6, v4")
        A(f"v_and_b32 v3, 8, v1")
        A(f"v_add_u32 v4, v4, v3")
        A(f"v_lshl_add_u32 v4, v4, 3, s{sT0}")
    poll(A, 16, addrC)
    stamp(A, 19)
    ST = 224
    ST = 220
    def hload(ks):
        for t in range(2):
            off = (t*14 + ks) * 1024
            A(f"s_add_u32 s{sT1}, s{sHBs}, {off & ~4095}")
            A(f"buffer_load_dwordx4 {f4(HF+(ks*2+t)*4)}, v{vL}, s[{sWS}:{sWS+3}], s{sT1} offen offset:{off & 4095} sc1", tag=f"h{ks}")
    def wreads3(ks, tiles):
        out = []
        for i in tiles:
            for u in range(2):
                base = 0 if ks < 8 else 1
                off = (32*ks + 16*u - (256 if base else 0)) * 224 + 32*i
                b = WF3 + 4*(i & 3) + 2*u
                out.append((f"ds_read_b64_tr_b16 v[{b}:{b+1}], v{vA3[base]} offset:{off}", f"w{ks}_{i}"))
        return out
    HPRE = 5
    hload(0)
    A(f"s_mov_b32 s{sT1}, {WS_ST}")
    for t in range(2):
        A(f"buffer_load_dwordx4 {f4(ST+4*t)}, v{T[6]}, s[{sWS}:{sWS+3}], s{sT1} offen offset:{1024*t} sc1", tag="st")
    for ks in range(1, HPRE): hload(ks)
    TA_, TB_ = [0, 1, 2, 3], [4, 5, 6]
    MEAN = [T[9], T[10]]; RSTD3 = [T[11], T[12]]
    XF = [2, 6]
    XF = [216, 24]
    XFs = 28
    def stats():
        A.wait_vm("st")
        for t in range(2):
            b = ST + 4*t
            A(f"v_cndmask_b32 v{b+2}, v{b+2}, 0, s[82:83]")
            A(f"v_cndmask_b32 v{b+3}, v{b+3}, 0, s[82:83]")
            A(f"v_add_f32 v{b}, v{b}, v{b+2}")
            A(f"v_add_f32 v{b+1}, v{b+1}, v{b+3}")
            for v in (b, b+1):
                for sw in ("v_permlane32_swap_b32", "v_permlane16_swap_b32"):
                    A(f"v_mov_b32 v{b+2}, v{v}")
                    A(f"{sw} v{v}, v{b+2}")
                    A(f"v_add_f32 v{v}, v{v}, v{b+2}")
            A(f"v_mul_f32 v{MEAN[t]}, {f32bits(1.0/448):#x}, v{b}")
            A(f"v_mul_f32 v{b+1}, {f32bits(1.0/448):#x}, v{b+1}")
            A(f"v_fma_f32 v{b+1}, -v{MEAN[t]}, v{MEAN[t]}, v{b+1}")
            A(f"v_max_f32 v{b+1}, 0, v{b+1}")
            A(f"v_add_f32 v{b+1}, {f32bits(1e-5):#x}, v{b+1}")
            A(f"v_rsq_f32 v{RSTD3[t]}, v{b+1}")
            A(f"v_sub_f32 v{b}, 0, v{MEAN[t]}")
            A(f"v_cvt_pk_bf16_f32 v{b+1}, v{b}, v{b}")
            A(f"v_lshlrev_b32 v{b+1}, 16, v{b+1}")
            A(f"v_sub_f32 v{b+1}, v{b}, v{b+1}")
            A(f"v_cvt_pk_bf16_f32 v{b+2}, v{b}, v{b+1}")
            A(f"v_cndmask_b32 v{b+2}, v{b+2}, 0, s[86:87]")
            A(f"v_mov_b32 v{b}, v{b+2}")
            A(f"v_mov_b32 v{b+1}, v{b+2}")
            A(f"v_mov_b32 v{b+2}, 0")
            A(f"v_mov_b32 v{b+3}, 0")
            x2 = 24 + 4*t
            A(f"v_mov_b32 v{x2}, 0")
            A(f"v_mov_b32 v{x2+1}, 0")
            A(f"v_mov_b32 v{x2+2}, v{b}")
            A(f"v_mov_b32 v{x2+3}, v{b}")
    def corr(i, t):
        a = ACC3 + (i*2+t)*4
        if i < 6: A(f"{M16} {f4(a)}, {f4(CA+2*i)}, {f4(ST+4*t)}, {f4(a)}")
        else: A(f"{M16} {f4(a)}, {f4(CA+10)}, {f4(24+4*t)}, {f4(a)}")
    sHO = 81
    A(f"s_lshr_b32 s{sT0}, s{sR}, 1")
    A(f"s_mul_i32 s{sT0}, s{sT0}, 7")
    A(f"s_mul_i32 s{sHO}, s{sTT3}, 56")
    A(f"s_add_u32 s{sHO}, s{sHO}, s{sT0}")
    A(f"s_lshl_b32 s{sHO}, s{sHO}, 10")
    A(f"s_add_u32 s{sHO}, s{sHO}, {WS_HID}")
    sOd = 88
    A(f"s_and_b32 s{sOd}, s{sR}, 1")
    BT = 30
    def epi_pair(i0, n, part):
        out = []
        for t in range(2):
            dst = ACC3 + (i0*2+t)*4
            for k in range(n):
                i = i0 + k
                a = ACC3 + (i*2+t)*4
                def f(i=i, a=a, k=k, t=t, dst=dst):
                    for j in range(4): A(f"v_accvgpr_read_b32 v{5+j}, a{BU+4*i+j}")
                    for j in range(4):
                        A(f"v_fma_f32 v{a+j}, v{a+j}, v{RSTD3[t]}, v{5+j}")
                    for j in range(4):
                        A(f"v_max_f32 v{a+j}, 0, v{a+j}")
                    for j in range(4):
                        A(f"v_mul_f32 v{a+j}, v{a+j}, v{a+j}")
                    A(f"v_cvt_pk_bf16_f32 v{dst+2*k}, v{a}, v{a+1}")
                    A(f"v_cvt_pk_bf16_f32 v{dst+2*k+1}, v{a+2}, v{a+3}")
                out.append(f)
            def st(t=t, dst=dst):
                if i0 in (0, 2):
                    A(f"s_lshl_b32 s{sT0}, s{sOd}, 11")
                    A(f"s_add_u32 s{sT0}, s{sT0}, {(i0//2)*1024 + t*56*1024}")
                elif i0 == 4:
                    A(f"s_lshl_b32 s{sT0}, s{sOd}, 10")
                    A(f"s_add_u32 s{sT0}, s{sT0}, {4*1024 + t*56*1024}")
                else:
                    A(f"s_lshl_b32 s{sT0}, s{sOd}, 3")
                    A(f"s_add_u32 s{sT0}, s{sT0}, {6*1024 + t*56*1024}")
                A(f"s_add_u32 s{sT0}, s{sT0}, s{sHO}")
                if n == 2: A(f"buffer_store_dwordx4 {f4(dst)}, v{vL}, s[{sWS}:{sWS+3}], s{sT0} offen sc1", tag=f"hst{part}")
                else: A(f"buffer_store_dwordx2 v[{dst}:{dst+1}], v{vL}, s[{sWS}:{sWS+3}], s{sT0} offen sc1", tag=f"hst{part}")
            out.append(st)
        return out
    def fd(part):
        def g():
            A(f"s_lshl_b32 s{sT0}, s{sG}, 9")
            A(f"s_lshl_b32 s{sT1}, s{sW}, 7")
            A(f"s_add_u32 s{sT0}, s{sT0}, s{sT1}")
            A(f"s_lshl_b32 s{sT1}, s{sR}, 3")
            A(f"s_add_u32 s{sT0}, s{sT0}, s{sT1}")
            A(f"s_add_u32 s{sT0}, s{sT0}, {FL_D + part*0x2000}")
        return g
    for x in wreads3(0, TA_): do(A, x)
    for ks in range(14):
        A.wait_vm(f"h{ks}")
        nxt = wreads3(ks+1, TA_) if ks + 1 < 14 else wreads3(0, TB_)
        for n, i in enumerate(TA_):
            A.wait_lg(f"w{ks}_{i}")
            b = WF3 + 4*(i & 3)
            for t in range(2):
                a = ACC3 + (i*2+t)*4
                cc = "0" if ks == 0 else f4(a)
                A(f"{M16} {f4(a)}, {f4(b)}, {f4(HF+(ks*2+t)*4)}, {cc}")
            for x in nxt[2*n:2*n+2]: do(A, x)
            if n == 1 and ks + HPRE < 14: hload(ks + HPRE)
        if ks == 7: stats()
    for i in TA_:
        for t in range(2): corr(i, t)
    stamp(A, 20)
    epiA = epi_pair(0, 2, 0) + epi_pair(2, 2, 0)
    for ks in range(14):
        nxt = wreads3(ks+1, TB_) if ks + 1 < 14 else []
        for n, i in enumerate(TB_):
            A.wait_lg(f"w{ks}_{i}")
            b = WF3 + 4*(i & 3)
            for t in range(2):
                a = ACC3 + (i*2+t)*4
                cc = "0" if ks == 0 else f4(a)
                A(f"{M16} {f4(a)}, {f4(b)}, {f4(HF+(ks*2+t)*4)}, {cc}")
            for x in nxt[2*n:2*n+2]: do(A, x)
        if epiA and ks < 12: epiA.pop(0)()
        if ks == 13:
            A.wait_vm("hst0")
            flag_store(A, fd(0))
    for i in TB_:
        for t in range(2): corr(i, t)
    for f in epi_pair(4, 2, 1) + epi_pair(6, 1, 1): f()
    stamp(A, 21)
    A(f"s_cmp_ge_u32 s{sR}, 14")
    lidle = A.newlabel("Lidle")
    A(f"s_cbranch_scc1 {lidle}")
    sTT4 = 77
    A(f"s_lshl_b32 s{sTT4}, s{sG}, 3")
    A(f"s_lshl_b32 s{sT0}, s{sTH}, 2")
    A(f"s_add_u32 s{sTT4}, s{sTT4}, s{sT0}")
    ACC4 = 32; BF = 96; NB = 12
    HR = 204; B2 = 212
    T = list(range(5, 19))
    A(f"v_lshlrev_b32 v{T[11]}, 3, v{G4}")
    for i in range(4):
        A(f"buffer_load_dwordx2 v[{B2+2*i}:{B2+2*i+1}], v{T[11]}, s[{sB2}:{sB2+3}], s{sCOL} offen offset:{32*i}", tag="hr")
    A(f"s_add_u32 s{sT0}, s{sTT4}, s{sW}")
    A(f"s_mul_i32 s{sT0}, s{sT0}, 14")
    A(f"s_lshl_b32 s{sT2}, s{sCS}, 1")
    A(f"s_add_u32 s{sT0}, s{sT0}, s{sT2}")
    A(f"s_lshl_b32 s{sT0}, s{sT0}, 10")
    A(f"s_add_u32 s{sT0}, s{sT0}, {WS_H}")
    A(f"buffer_load_dwordx4 {f4(HR)}, v{vL}, s[{sWS}:{sWS+3}], s{sT0} offen sc1", tag="hr")
    A(f"buffer_load_dwordx4 {f4(HR+4)}, v{vL}, s[{sWS}:{sWS+3}], s{sT0} offen offset:1024 sc1", tag="hr")
    A.wait_vm("hst1")
    flag_store(A, fd(1))
    sHB = 80
    A(f"s_mul_i32 s{sHB}, s{sTT4}, {56*1024}")
    A(f"s_mul_i32 s{sT2}, s{sW}, {14*1024}")
    A(f"s_add_u32 s{sHB}, s{sHB}, s{sT2}")
    A(f"s_add_u32 s{sHB}, s{sHB}, {WS_HID}")
    def addrD(part):
        def g():
            A(f"s_lshl_b32 s{sT0}, s{sG}, 9")
            A(f"s_lshl_b32 s{sT1}, s{sTH}, 8")
            A(f"s_add_u32 s{sT0}, s{sT0}, s{sT1}")
            A(f"s_lshl_b32 s{sT1}, s{sW}, 5")
            A(f"s_add_u32 s{sT0}, s{sT0}, s{sT1}")
            A(f"s_add_u32 s{sT0}, s{sT0}, {FL_D + part*0x2000}")
            A(f"v_and_b32 v4, 3, v1")
            A(f"v_lshlrev_b32 v4, 3, v4")
            A(f"v_bfe_u32 v3, v1, 2, 1")
            A(f"v_lshl_add_u32 v4, v3, 7, v4")
            A(f"v_add_u32 v4, s{sT0}, v4")
        return g
    poll(A, 8, addrD(0))
    stamp(A, 22)
    order = [7*pp + m for pp in range(2) for m in range(4)] + [7*pp + m for pp in range(2) for m in range(4, 7)]
    seq = [(ks, tt) for ks in order for tt in range(4)]
    def bload(n):
        ks, tt = seq[n]
        off = tt*56*1024 + ks*1024
        slot = n % NB
        A(f"s_add_u32 s{sT0}, s{sHB}, {off}")
        A(f"buffer_load_dwordx4 {f4(BF+4*slot)}, v{vL}, s[{sWS}:{sWS+3}], s{sT0} offen sc1", tag=f"b{n}")
    for n in range(NB): bload(n)
    started = set()
    for n in range(56):
        ks, tt = seq[n]
        slot = n % NB
        A.wait_vm(f"b{n}")
        for i in range(4):
            a = ACC4 + (tt*4+i)*4
            cc = "0" if (tt, i) not in started else f4(a)
            started.add((tt, i))
            wa = (ks*4+i)*4
            A(f"{M16} {f4(a)}, a[{wa}:{wa+3}], {f4(BF+4*slot)}, {cc}")
        if n + NB < 56:
            if n + NB == 32:
                poll(A, 8, addrD(1))
                A.vm = [f"b{q}" for q in []]
            bload(n + NB)
    stamp(A, 23)
    A("s_barrier")
    A(f"s_lshl_b32 s{sT0}, s{sW}, 14")
    A(f"v_add_u32 v{T[0]}, s{sT0}, v{vL}")
    for tt in range(4):
        for i in range(4):
            a = ACC4 + (tt*4+i)*4
            A(f"ds_write_b128 v{T[0]}, {f4(a)} offset:{(tt*4+i)*1024}")
    A("s_waitcnt lgkmcnt(0)")
    A("s_barrier")
    A(f"s_lshl_b32 s{sT0}, s{sW}, 12")
    A(f"v_add_u32 v{T[0]}, s{sT0}, v{vL}")
    RB = 96
    for w2 in range(4):
        for i in range(4):
            A(f"ds_read_b128 {f4(RB+(w2*4+i)*4)}, v{T[0]} offset:{w2*16384 + i*1024}")
    A("s_waitcnt lgkmcnt(0)")
    for i in range(4):
        for j in range(4):
            r = RB + 4*i + j
            A(f"v_add_f32 v{r}, v{r}, v{r+16}")
            A(f"v_add_f32 v{r+32}, v{r+32}, v{r+48}")
            A(f"v_add_f32 v{r}, v{r}, v{r+32}")
        for d in range(2):
            for src in (HR, B2):
                A(f"v_lshlrev_b32 v{T[1]}, 16, v{src+2*i+d}")
                A(f"v_and_b32 v{T[2]}, 0xffff0000, v{src+2*i+d}")
                A(f"v_add_f32 v{RB+4*i+2*d}, v{RB+4*i+2*d}, v{T[1]}")
                A(f"v_add_f32 v{RB+4*i+2*d+1}, v{RB+4*i+2*d+1}, v{T[2]}")
    PKD = 176
    for i in range(4):
        A(f"v_cvt_pk_bf16_f32 v{PKD+2*i}, v{RB+4*i}, v{RB+4*i+1}")
        A(f"v_cvt_pk_bf16_f32 v{PKD+2*i+1}, v{RB+4*i+2}, v{RB+4*i+3}")
    for pr in range(2):
        b = PKD + 4*pr
        A(f"v_permlane16_swap_b32 v{b}, v{b+2}")
        A(f"v_permlane16_swap_b32 v{b+1}, v{b+3}")
    A(f"s_add_u32 s{sT0}, s{sTT4}, s{sW}")
    A(f"s_lshl_b32 s{sT0}, s{sT0}, 4")
    A(f"v_and_b32 v{T[1]}, 15, v1")
    A(f"v_add_u32 v{T[1]}, s{sT0}, v{T[1]}")
    A(f"v_mul_u32_u24 v{T[1]}, 896, v{T[1]}")
    A(f"v_and_b32 v{T[2]}, 1, v{G4}")
    A(f"v_lshl_add_u32 v{T[1]}, v{T[2]}, 5, v{T[1]}")
    A(f"v_lshrrev_b32 v{T[2]}, 1, v{G4}")
    A(f"v_lshl_add_u32 v{T[1]}, v{T[2]}, 4, v{T[1]}")
    for pr in range(2):
        b = PKD + 4*pr
        A(f"buffer_store_dwordx4 {f4(b)}, v{T[1]}, s[{sOUT}:{sOUT+3}], s{sCOL} offen offset:{64*pr}")
    A(f"s_branch Lfin")
    A.label(lidle)
    A("s_waitcnt vmcnt(0)")
    flag_store(A, fd(1))
    A.label("Lfin")
    stamp(A, 24)
    stamp_dump(A)
    A.label("Lend")
    A("s_endpgm")

def build(path):
    out = HDR
    out += f"; @launch grid=(256,1,1) block=(256,1,1) lds={LDS_TOTAL}\n"
    out += '.amdgcn_target "amdgcn-amd-amdhsa--gfx950"\n.text\n'
    A = Asm()
    kernel(A)
    out += A.text()
    out += f""".section .rodata,"a"
.p2align 6
.amdhsa_kernel {KNAME}
  .amdhsa_next_free_vgpr 512
  .amdhsa_next_free_sgpr 100
  .amdhsa_accum_offset 256
  .amdhsa_group_segment_fixed_size 0
  .amdhsa_kernarg_size 88
  .amdhsa_user_sgpr_count 2
  .amdhsa_user_sgpr_kernarg_segment_ptr 1
  .amdhsa_system_sgpr_workgroup_id_x 1
  .amdhsa_float_denorm_mode_32 3
  .amdhsa_float_denorm_mode_16_64 3
.end_amdhsa_kernel
"""
    print("lines", len(A.lines), "nops", A.nop_count, file=sys.stderr)
    open(path, "w").write(out)

if __name__ == "__main__":
    args = [a for a in sys.argv[1:] if not a.startswith("--")]
    for a in sys.argv[1:]:
        if a.startswith("--"): OPT[a[2:]] = True
    build(args[0] if args else "f.s")
```
